```python
import torch

def _softmax(x, axis=-1):
    return torch.softmax(x, dim=axis)
def _gelu(x):
    return torch.nn.functional.gelu(x, approximate="tanh")
def _silu(x):
    return torch.nn.functional.silu(x)
def _sigmoid(x):
    return torch.sigmoid(x)
def _layernorm(x, axis=-1, eps=1e-5):
    m = x.mean(dim=axis, keepdim=True)
    v = x.var(dim=axis, keepdim=True, unbiased=False)
    return (x - m) / torch.sqrt(v + eps)
def _scatter_add(tgt, idx, src, axis=0):
    return tgt.clone().index_add_(axis, idx, src)
def _segment_sum(src, seg, n):
    out = torch.zeros((n,) + src.shape[1:], dtype=src.dtype)
    return out.index_add_(0, seg, src)
def _pad(x, pw):
    flat = tuple(v for pair in reversed(pw) for v in pair)
    return torch.nn.functional.pad(x, flat)

kernel_name = 'sequential_preLN__linear_attn_block__dense_activation_squared_relu__prompt'

def setup_inputs():

    _w = (lambda a: (lambda t: t.to(torch.bfloat16) if t.is_floating_point() else t)(torch.as_tensor(a)))
    def _A_setup():
        B, S, D = 1, 2048, 448
        return {
            "x": _w((lambda *s: torch.randn(*s, dtype=torch.bfloat16) * 0.05)(B, S, D)),
            "wqkv": _w((lambda *s: torch.randn(*s, dtype=torch.bfloat16) * 0.1)(D, 3 * D)),
            "wo": _w((lambda *s: torch.randn(*s, dtype=torch.bfloat16) * 0.05)(D, D)),
        }
    _A_in = _A_setup()

    def _B_setup():
        B, S, D, F = 1, 2048, 448, 1792
        return {
            "x": _w((lambda *s: torch.randn(*s, dtype=torch.bfloat16) * 0.05)(B, S, D)),
            "w1": _w((lambda *s: torch.randn(*s, dtype=torch.bfloat16) * 0.05)(D, F)),
            "b1": _w((lambda *s: torch.randn(*s, dtype=torch.bfloat16) * 0.2)(F)),
            "w2": _w((lambda *s: torch.randn(*s, dtype=torch.bfloat16) * 0.05)(F, D)),
            "b2": _w((lambda *s: torch.randn(*s, dtype=torch.bfloat16) * 0.8)(D)),
        }
    _B_in = _B_setup()

    return {
        "A_x": _A_in["x"],
        "A_wqkv": _A_in["wqkv"],
        "A_wo": _A_in["wo"],
        "B_x": _B_in["x"],
        "B_w1": _B_in["w1"],
        "B_b1": _B_in["b1"],
        "B_w2": _B_in["w2"],
        "B_b2": _B_in["b2"],
    }

def reference(A_x, A_wqkv, A_wo, B_x, B_w1, B_b1, B_w2, B_b2):
    def _A_ref(x, wqkv, wo):
        B, S, D = x.shape
        H = 16; Dh = D // H
        qkv = (lambda x, *d: x.permute(*d))((x @ wqkv).reshape(B, S, 3, H, Dh), 2, 0, 3, 1, 4)
        q, k, v = qkv[0], qkv[1], qkv[2]
        phi = lambda t: torch.where(t > 0, t + 1, torch.exp(t)) + 1e-6
        pq, pk = phi(q), phi(k)
        kv = torch.einsum("bhsd,bhse->bhde", pk, v)
        z = torch.einsum("bhsd->bhd", pk)
        num = torch.einsum("bhqd,bhde->bhqe", pq, kv)
        den = torch.einsum("bhqd,bhd->bhq", pq, z)[..., None] + 1e-6
        o = num / den
        return (lambda x, *d: x.permute(*d))(o, 0, 2, 1, 3).reshape(B, S, D) @ wo

    def _B_ref(x, w1, b1, w2, b2):
        h = torch.einsum("bsd,df->bsf", x, w1) + b1
        zero = torch.zeros_like(h)
        r = torch.where(h > zero, h, zero)
        h = r * r
        out = torch.einsum("bsf,fd->bsd", h, w2) + b2
        return out

    x = A_x
    h = x + _A_ref(_layernorm(x, axis=-1), A_wqkv, A_wo)
    h2 = h + _B_ref(_layernorm(h, axis=-1), B_w1, B_b1, B_w2, B_b2)
    return h2
```

```python
import re

def regs_of(op):
    op = op.strip()
    neg = op.lstrip('-')
    m = re.fullmatch(r'(?:abs\(|\|)?([vas])(\d+)(?:\)|\|)?', neg)
    if m: return [m.group(1) + m.group(2)]
    m = re.fullmatch(r'([vas])\[(\d+):(\d+)\]', neg)
    if m: return [m.group(1) + str(i) for i in range(int(m.group(2)), int(m.group(3)) + 1)]
    if neg in ('vcc', 'exec', 'm0', 'scc'): return [neg]
    if neg in ('vcc_lo', 'vcc_hi'): return ['vcc']
    if neg in ('exec_lo', 'exec_hi'): return ['exec']
    return []

TRANS = ('v_exp_f32', 'v_log_f32', 'v_rcp_f32', 'v_rsq_f32', 'v_sqrt_f32', 'v_sin_f32', 'v_cos_f32')

class Ins:
    __slots__ = ('text', 'op', 'kind', 'w', 'r', 'srcC', 'srcAB', 'passes', 'wide_store', 'data', 'slot', 'isdma')
    def __init__(self, text):
        self.text = text
        t = text.split(';')[0].strip()
        parts = t.split(None, 1)
        self.op = parts[0]
        rest = parts[1] if len(parts) > 1 else ''
        ops = [o.strip() for o in rest.split(',')] if rest else []
        mods = []
        if ops:
            sp = ops[-1].split()
            ops[-1] = sp[0] if sp else ''
            mods = sp[1:]
        op = self.op
        self.w = []; self.r = []; self.srcC = []; self.srcAB = []; self.passes = 0
        self.wide_store = False; self.data = []; self.isdma = False
        R = lambda i: regs_of(ops[i]) if i < len(ops) else []
        if op.startswith('v_mfma'):
            self.kind = 'mfma'
            self.w = R(0); self.srcAB = R(1) + R(2); self.srcC = R(3); self.r = self.srcAB + self.srcC
            self.passes = 8 if '32x32x16' in op else 4
        elif op.startswith('v_'):
            self.kind = 'valu'
            if op.startswith('v_cmp'):
                self.w = R(0); self.r = R(1) + R(2)
            elif op.startswith('v_permlane'):
                self.w = R(0) + R(1); self.r = R(0) + R(1)
            elif op.startswith(('v_add_co', 'v_sub_co', 'v_addc_co', 'v_subb_co')):
                self.w = R(0) + R(1); self.r = sum((R(i) for i in range(2, len(ops))), [])
            elif op == 'v_nop':
                pass
            else:
                self.w = R(0); self.r = sum((R(i) for i in range(1, len(ops))), [])
                if op.startswith(('v_fmac', 'v_dot2c', 'v_writelane')) or 'dpp' in op or 'sdwa' in op: self.r = self.r + R(0)
        elif op.startswith('ds_'):
            self.kind = 'ds'
            if op.startswith('ds_read') or op.startswith('ds_bpermute') or op.startswith('ds_swizzle'):
                self.w = R(0); self.r = sum((R(i) for i in range(1, len(ops))), [])
            else:
                self.r = sum((R(i) for i in range(len(ops))), [])
        elif op.startswith(('buffer_', 'global_')):
            self.kind = 'vmem'
            if 'lds' in mods or op.startswith('global_load_lds'):
                self.isdma = True
                self.r = sum((R(i) for i in range(len(ops))), []) + ['m0']
            elif '_load' in op:
                self.w = R(0); self.r = sum((R(i) for i in range(1, len(ops))), [])
            elif op.startswith('buffer_store'):
                self.data = R(0); self.r = sum((R(i) for i in range(len(ops))), [])
                self.wide_store = op.endswith(('x3', 'x4'))
            elif op.startswith('global_store'):
                self.data = R(1); self.r = sum((R(i) for i in range(len(ops))), [])
                self.wide_store = op.endswith(('x3', 'x4'))
            else:
                self.r = sum((R(i) for i in range(len(ops))), [])
        elif op.startswith(('s_load', 's_memrealtime', 's_memtime', 's_buffer_load')):
            self.kind = 'smem'
            self.w = R(0); self.r = sum((R(i) for i in range(1, len(ops))), [])
        elif op.startswith('s_'):
            self.kind = 'salu'
            if op.startswith(('s_cmp', 's_cbranch', 's_branch', 's_barrier', 's_waitcnt', 's_nop', 's_sleep', 's_setprio', 's_endpgm', 's_bitcmp')):
                self.r = sum((R(i) for i in range(len(ops))), [])
                if op.startswith('s_cbranch_vcc'): self.r = ['vcc']
            else:
                self.w = R(0); self.r = sum((R(i) for i in range(1, len(ops))), [])
                if 'saveexec' in op: self.w = self.w + ['exec']
        else:
            raise ValueError('unknown instruction: ' + text)

def need_gap(p, c):
    g = 0
    pw, cr, cw = set(p.w), set(c.r), set(c.w)
    isv = lambda s: {x for x in s if x[0] in 'va' and x not in ('vcc',)}
    iss = lambda s: {x for x in s if x[0] == 's' or x == 'vcc'}
    if p.kind == 'valu':
        if c.kind == 'mfma' and isv(pw) & cr: g = max(g, 3 if p.op.startswith('v_dot') else 2)
        if c.kind == 'vmem' and iss(pw) & cr: g = max(g, 5)
        if c.kind == 'valu' and iss(pw) & cr: g = max(g, 4 if c.op.startswith(('v_readlane', 'v_writelane')) else 2)
        if c.kind == 'valu' and c.op.startswith(('v_readlane', 'v_readfirstlane')) and isv(pw) & cr: g = max(g, 1)
        if c.kind == 'valu' and c.op.startswith('v_permlane') and isv(pw) & cr: g = max(g, 2)
        if c.kind == 'valu' and 'dpp' in c.text and isv(pw) & cr: g = max(g, 2)
        if p.op.startswith(TRANS) and c.kind in ('valu', 'ds', 'vmem') and isv(pw) & cr: g = max(g, 1)
        if p.op.startswith('v_dot') and c.kind != 'salu' and (isv(pw) & (cr | cw)):
            same = c.op == p.op and not (isv(pw) & set(c.r[:-len(c.w)] if c.w else c.r))
            if not same: g = max(g, 3)
        if ('sdwa' in p.text or 'op_sel' in p.text) and c.kind == 'valu' and isv(pw) & (cr | cw): g = max(g, 1)
        if c.kind == 'salu' and iss(pw) & cr: g = max(g, 1)
        if 'exec' in pw and c.kind in ('mfma', 'valu'): g = max(g, 5)
    if p.kind == 'mfma':
        big = {8: 12, 4: 8}[p.passes]
        if c.kind == 'mfma':
            if pw & set(c.srcAB): g = max(g, big)
            if pw & set(c.srcC):
                if not (c.srcC == p.w and c.passes == p.passes): g = max(g, {8: 10, 4: 6}[p.passes])
            elif pw & cw: g = max(g, big)
        elif c.kind in ('valu', 'ds', 'vmem'):
            if pw & (cr | cw): g = max(g, big)
            if c.kind == 'valu' and set(p.srcC) & cw: g = max(g, {8: 7, 4: 3}[p.passes])
    if p.kind == 'salu':
        if 'm0' in pw and c.kind == 'vmem' and c.isdma: g = max(g, 1)
    if p.kind == 'vmem' and p.wide_store and set(p.data) & cw: g = max(g, 2)
    return g

class Asm:
    def __init__(self):
        self.out = []
        self.hist = []
        self.slot = 0
        self.vm_n = 0; self.vm_done = 0
        self.lg_n = 0; self.lg_done = 0
        self.pend = {}
        self.smem_out = False
        self.nlab = 0
        self.nnops = 0
    def raw(self, s): self.out.append(s)
    def comment(self, s): self.out.append('    ; ' + s)
    def _push(self, ins, slots=1):
        ins.slot = self.slot
        self.slot += slots
        self.out.append('    ' + ins.text)
        self.hist.append(ins)
        if len(self.hist) > 40: self.hist.pop(0)
    def _wait(self, vm=None, lg=None):
        parts = []
        if vm is not None and vm > self.vm_done:
            n = min(self.vm_n - vm, 62); parts.append(f'vmcnt({n})'); self.vm_done = self.vm_n - n
        if lg is not None and lg > self.lg_done:
            if self.smem_out: n = 0; self.smem_out = False
            else: n = min(self.lg_n - lg, 14)
            parts.append(f'lgkmcnt({n})'); self.lg_done = self.lg_n - n
        if parts:
            self._push(Ins('s_waitcnt ' + ' '.join(parts)))
            self.pend = {r: v for r, v in self.pend.items() if not (v[1] <= (self.vm_done if v[0] == 'vm' else self.lg_done))}
    def wait(self, *toks):
        vm = max([t[1] for t in toks if t and t[0] == 'vm'], default=None)
        lg = max([t[1] for t in toks if t and t[0] == 'lg'], default=None)
        self._wait(vm, lg)
    def wait_all(self, vm=True, lg=True):
        self._wait(self.vm_n if vm else None, self.lg_n if lg else None)
    def last_vm(self): return ('vm', self.vm_n)
    def last_lg(self): return ('lg', self.lg_n)
    def I(self, text):
        ins = Ins(text)
        vm = lg = None
        for r in set(ins.r) | set(ins.w):
            if r in self.pend:
                k, s = self.pend[r]
                if k == 'vm': vm = max(vm or 0, s)
                else: lg = max(lg or 0, s)
        self._wait(vm, lg)
        need = 0
        for p in self.hist:
            g = need_gap(p, ins)
            if g:
                have = self.slot - p.slot - 1
                need = max(need, g - have)
        while need > 0:
            n = min(need, 16)
            self._push(Ins(f's_nop {n-1}'), n); need -= n; self.nnops += 1
        m = re.fullmatch(r's_nop (\d+)', text.strip())
        self._push(ins, int(m.group(1)) + 1 if m else 1)
        tok = None
        if ins.kind == 'vmem':
            self.vm_n += 1; tok = ('vm', self.vm_n)
        elif ins.kind == 'ds':
            self.lg_n += 1; tok = ('lg', self.lg_n)
        elif ins.kind == 'smem':
            self.lg_n += 1; tok = ('lg', self.lg_n); self.smem_out = True
        if tok:
            for r in ins.w: self.pend[r] = tok
        return tok
    def __call__(self, text):
        tok = None
        for line in text.strip().split('\n'):
            line = line.strip()
            if not line or line.startswith(';'): continue
            if line.endswith(':'): self.label(line[:-1]); continue
            t = self.I(line)
            if t: tok = t
        return tok
    def label(self, name):
        self.out.append(name + ':')
    def newlabel(self, base='L'):
        self.nlab += 1
        return f'{base}_{self.nlab}'
    def fence(self):
        need = 0
        for p in self.hist:
            g = {'mfma': 12, 'valu': 5, 'vmem': 2, 'salu': 1}.get(p.kind, 0)
            need = max(need, g - (self.slot - p.slot - 1))
        if need > 0: self._push(Ins(f's_nop {need-1}'), need)
    def barrier(self, *toks):
        self.wait(*toks)
        self._push(Ins('s_barrier'))
    def text(self): return '\n'.join(self.out) + '\n'

def interleave(mains, fillers, lead=0):
    out = []
    n = len(mains); m = len(fillers); k = 0
    for i, f in enumerate(mains):
        out.append(f)
        tgt = 0 if i < lead else ((i - lead + 1) * m + (n - lead) - 1) // (n - lead)
        while k < min(tgt, m): out.append(fillers[k]); k += 1
    out += fillers[k:]
    return out
```

```python
import sys
from dsl import *
NAME = "sequential_preLN__linear_attn_block__dense_activation_squared_relu__prompt"
HDR = open("cdna_kernels/" + NAME + ".s.ref").read().split("; Override launch")[0]

WS_EPOCH = 0
WS_FF = 0x1000
WS_FS = 0x11000
WS_KVP = 0x40000
WS_O = 0x200000
WS_H = 0x400000
WS_ST = 0x600000
WS_H1 = 0x800000
WS_STAMP = 0x1000000
WS_SIZE = 0x1100000
L_W = 114688
L_WQ = L_W + 8192
L_RED = L_W + 4 * 8192 + 4096
L_WO = 0
L_O = 58368
L_W1S = 58368
L_STG = 123904
L_MISC = L_STG + 32768
SX, SWQ, SWO, SW1, SW2, SWS, SOUT, SB1, SB2 = [f"s[{b}:{b+3}]" for b in (8, 12, 16, 20, 24, 28, 32, 36, 40)]
sW, sRB, sJ, sCT, sHF = "s3", "s4", "s5", "s6", "s7"
sNON, sONE = "s60", "s61"
XF = 16
ACC = [128, 144, 160, 176]
T = 192
def v(b, n=1): return f"v{b}" if n == 1 else f"v[{b}:{b+n-1}]"
def a(b, n=1): return f"a{b}" if n == 1 else f"a[{b}:{b+n-1}]"
MF = "v_mfma_f32_32x32x16_bf16"
SPIN_MAX = 20000

def gen(stamps=False, stop=99):
    A = Asm()
    ns = [0]
    sreg = lambda i: 70 + 2 * i if i < 16 else 48 + 2 * (i - 16)
    def stamp():
        if stamps:
            b = sreg(ns[0]); A(f"s_memrealtime s[{b}:{b+1}]")
        ns[0] += 1
    def dma(vaddr, srd, soff, ldsaddr_s, ldsoff, flags=""):
        A(f"s_add_u32 m0, {ldsaddr_s}, {ldsoff}")
        return A(f"buffer_load_dwordx4 {vaddr}, {srd}, {soff} offen {flags} lds")
    def setflag(off_s):
        A(f"""s_add_u32 s62, {off_s}, {WS_FF}
              s_add_u32 s63, {off_s}, {WS_FS}
              s_mov_b64 exec, 1
              buffer_store_dword v14, v15, {SWS}, s62 offen
              buffer_store_dword v14, v15, {SWS}, s63 offen sc1
              s_mov_b64 exec, -1""")
    def poll(voff, off_s):
        l = A.newlabel("Lpoll"); d = A.newlabel("Lpd"); n = A.newlabel("Lpn")
        A(f"""s_add_u32 s62, {off_s}, {WS_FF}
              s_add_u32 s63, {off_s}, {WS_FS}
              s_mov_b32 s64, 0""")
        A.fence()
        A.label(l)
        A(f"buffer_load_dword v13, {voff}, {SWS}, s62 offen sc1")
        A(f"v_cmp_ne_u32 vcc, v13, v14")
        A(f"s_cbranch_vccz {d}")
        A(f"""s_add_u32 s64, s64, 1
              s_cmp_lt_u32 s64, 8
              s_cbranch_scc1 {l}""")
        A(f"buffer_load_dword v13, {voff}, {SWS}, s63 offen sc1")
        A(f"v_cmp_ne_u32 vcc, v13, v14")
        A(f"s_cbranch_vccz {d}")
        A(f"""s_cmp_lt_u32 s64, {SPIN_MAX}
              s_cbranch_scc1 {l}""")
        A.label(d)
        A.fence()

    stamp()
    A(f"""s_cmp_ge_u32 s2, 256
          s_cbranch_scc1 Lend
          s_load_dwordx16 s[44:59], s[0:1], 0
          s_load_dwordx2 s[32:33], s[0:1], 64
          s_load_dwordx2 s[28:29], s[0:1], 80
          v_lshrrev_b32 v2, 6, v0
          v_and_b32 v1, 63, v0
          s_and_b32 s62, s2, 7
          s_lshr_b32 s63, s2, 3
          v_readfirstlane_b32 {sW}, v2
          s_lshr_b32 s64, s63, 4
          s_lshl_b32 {sRB}, s62, 1
          s_add_u32 {sRB}, {sRB}, s64
          s_and_b32 {sJ}, s63, 15
          s_cmp_ge_u32 {sJ}, 7
          s_cselect_b32 {sHF}, 1, 0
          s_mul_i32 s64, s64, 3
          s_add_u32 {sCT}, {sJ}, s64
          s_add_u32 {sCT}, {sCT}, s62
          s_mul_i32 s64, {sCT}, 37
          s_lshr_b32 s64, s64, 8
          s_mul_i32 s64, s64, 7
          s_sub_u32 {sCT}, {sCT}, s64
          s_mov_b32 {sONE}, 0x3f803f80""")
    A(f"""v_lshrrev_b32 v5, 3, v1
          v_and_b32 v6, 7, v1
          v_lshrrev_b32 v7, 1, v5
          v_xor_b32 v6, v6, v7
          v_mul_u32_u24 v5, 896, v5
          v_lshl_add_u32 v2, v6, 4, v5
          v_xor_b32 v6, 4, v6
          v_lshl_add_u32 v3, v6, 4, v5
          v_lshrrev_b32 v5, 2, v1
          v_and_b32 v6, 3, v1
          v_mul_u32_u24 v5, 2688, v5
          v_lshl_add_u32 v4, v6, 4, v5
          v_mov_b32 v15, 0""")
    A.wait_all()
    def srd(d, p, n):
        b = int(d[2:d.index(':')])
        if b != p: A(f"s_mov_b32 s{b}, s{p}")
        A(f"s_and_b32 s{b+1}, s{p+1}, 0xffff\ns_mov_b32 s{b+2}, {n}\ns_mov_b32 s{b+3}, 0x20000")
    srd(SX, 44, 2048 * 896); srd(SWQ, 46, 448 * 2688); srd(SWS, 28, WS_SIZE)
    A(f"""s_lshl_b32 s65, {sRB}, 2
          s_add_u32 s65, s65, {sW}
          s_mul_i32 s65, s65, {32*896}
          s_mul_i32 s66, {sJ}, 56
          s_mul_i32 s62, {sW}, {16*2688}
          s_add_u32 s66, s66, s62
          s_mov_b32 s67, {sCT}
          s_lshl_b32 s68, {sW}, 12
          s_lshl_b32 s69, {sW}, 10
          s_add_u32 s69, s69, {L_W}""")
    A(f"buffer_load_dword v14, v15, {SWS}, 0 offen sc1")
    def chunk_issue(i):
        fs = []
        def f0():
            A(f"""s_mul_i32 s63, s67, {64*2688}
                  s_add_u32 s63, s63, s66
                  s_add_u32 s62, s63, 896""")
            dma("v4", SWQ, "s62", "s69", (i % 6) * 8192)
        def f1():
            A(f"s_add_u32 s62, s63, 1792")
            dma("v4", SWQ, "s62", "s69", (i % 6) * 8192 + 4096)
            A(f"s_lshl_b32 s63, s67, 7\ns_add_u32 s63, s63, s65")
        fs += [f0, f1]
        for b in range(4):
            def fx(b=b):
                if b: A(f"s_add_u32 s63, s63, {8*896}")
                t = dma("v3" if b & 1 else "v2", SX, "s63", "s68", i * 16384 + b * 1024)
                if b == 3:
                    A("s_add_u32 s67, s67, 1\ns_cmp_eq_u32 s67, 7\ns_cselect_b32 s67, 0, s67")
                    ctok[i] = t
            fs.append(fx)
        return fs
    ctok = {}
    for f in chunk_issue(0) + chunk_issue(1): f()
    stamp()
    srd(SWO, 48, 448 * 896); srd(SW1, 52, 448 * 3584); srd(SB1, 54, 3584); srd(SW2, 56, 1792 * 896); srd(SB2, 58, 896); srd(SOUT, 32, 2048 * 896)
    A(f"""v_and_b32 v10, 31, v1
          v_lshrrev_b32 v11, 5, v1
          v_lshrrev_b32 v12, 1, v10
          v_and_b32 v12, 7, v12
          v_xor_b32 v12, v12, v11
          v_lshlrev_b32 v12, 4, v12
          v_lshl_add_u32 v5, v10, 7, v12
          v_add_u32 v5, s68, v5
          v_xor_b32 v6, 32, v5
          v_xor_b32 v7, 64, v5
          v_xor_b32 v8, 0x60, v5
          v_bfe_u32 v12, v1, 2, 2
          v_lshl_add_u32 v12, v11, 3, v12
          v_lshlrev_b32 v9, 6, v12
          v_bfe_u32 v12, v1, 4, 1
          v_lshl_add_u32 v9, v12, 5, v9
          v_and_b32 v12, 3, v1
          v_lshl_add_u32 v9, v12, 3, v9
          v_add_u32 v9, {L_W}, v9""")
    A(f"""s_lshr_b32 s62, {sW}, 1
          s_lshl_b32 s62, s62, 1
          s_add_u32 s62, s62, {sHF}
          s_lshl_b32 s62, s62, 12
          s_and_b32 s63, {sW}, 1
          s_lshl_b32 s63, s63, 2
          v_lshrrev_b32 v12, 1, v10
          v_and_b32 v12, 7, v12
          v_xor_b32 v12, s63, v12
          v_lshlrev_b32 v12, 4, v12
          v_lshl_add_u32 v12, v10, 7, v12
          v_lshl_add_u32 v12, v11, 3, v12
          v_add_u32 v12, s62, v12""")
    SUM, SQ, CSK, CSV = T + 32, T + 33, T + 34, T + 35
    XR = 240
    A(f"v_mov_b32 {v(SUM)}, 0\nv_mov_b32 {v(SQ)}, 0\nv_mov_b32 {v(CSK)}, 0\nv_mov_b32 {v(CSV)}, 0")
    wq_tok = [None]
    def wq_issue():
        fs = []
        for i in range(7):
            def f(i=i):
                A(f"""s_mul_i32 s62, s67, {64*2688}
                      s_add_u32 s62, s62, s66
                      s_add_u32 s67, s67, 1
                      s_cmp_eq_u32 s67, 7
                      s_cselect_b32 s67, 0, s67""")
                wq_tok[0] = dma("v4", SWQ, "s62", "s69", 8192 + i * 4096)
            fs.append(f)
        return fs
    for i in range(7):
        A.barrier(ctok[i], A.last_lg())
        if i == 0:
            for q in range(4):
                A(f"v_xor_b32 v13, {q*16}, v12" if q else "v_mov_b32 v13, v12")
                A(f"ds_read_b64 {a(XR+2*q,2)}, v13")
        if i == 4:
            for r in range(5, 9): A(f"v_add_u32 v{r}, 0x10000, v{r}")
        xo = (i % 4) * 16384
        wo_ = (i % 6) * 8192
        def rd(t):
            wf = T + (t % 4) * 8
            A(f"ds_read_b128 {v(XF+(i*4+t)*4,4)}, v{5+t} offset:{xo}")
            A(f"ds_read_b64_tr_b16 {v(wf,2)}, v9 offset:{wo_+t*1024}")
            A(f"ds_read_b64_tr_b16 {v(wf+2,2)}, v9 offset:{wo_+t*1024+256}")
            A(f"ds_read_b64_tr_b16 {v(wf+4,2)}, v9 offset:{wo_+4096+t*1024}")
            A(f"ds_read_b64_tr_b16 {v(wf+6,2)}, v9 offset:{wo_+4096+t*1024+256}")
        fill = chunk_issue(i + 2) if i + 2 < 7 else (wq_issue() if i == 5 else [])
        rd(0); rd(1); rd(2)
        for t in range(4):
            wf = T + (t % 4) * 8; xf = XF + (i * 4 + t) * 4
            first = (i == 0 and t == 0)
            A(f"{MF} {v(ACC[0],16)}, {v(xf,4)}, {v(wf,4)}, {'0' if first else v(ACC[0],16)}")
            if t == 0: rd(3)
            for d in range(4):
                A(f"v_dot2c_f32_bf16 {v(SUM)}, {sONE}, {v(xf+d)}")
                A(f"v_dot2c_f32_bf16 {v(CSK)}, {sONE}, {v(wf+d)}")
            A(f"{MF} {v(ACC[1],16)}, {v(xf,4)}, {v(wf+4,4)}, {'0' if first else v(ACC[1],16)}")
            for d in range(4):
                A(f"v_dot2c_f32_bf16 {v(SQ)}, {v(xf+d)}, {v(xf+d)}")
                A(f"v_dot2c_f32_bf16 {v(CSV)}, {sONE}, {v(wf+4+d)}")
            for f in fill[t * 2:(t + 1) * 2]: f()
    stamp()
    MEAN, RSTD = T + 36, T + 37
    TM = T + 40
    for r in (SUM, SQ, CSK, CSV):
        A(f"v_mov_b32 {v(TM)}, {v(r)}\nv_permlane32_swap_b32 {v(r)}, {v(TM)}\nv_add_f32 {v(r)}, {v(r)}, {v(TM)}")
    def finish_stats(s_, q_, mean, rstd, tmp):
        A(f"""v_mul_f32 {v(mean)}, {hex(f2u(1.0/448))}, {v(s_)}
              v_mul_f32 {v(tmp)}, {v(mean)}, {v(mean)}
              v_mul_f32 {v(rstd)}, {hex(f2u(1.0/448))}, {v(q_)}
              v_sub_f32 {v(rstd)}, {v(rstd)}, {v(tmp)}
              v_max_f32 {v(rstd)}, 0, {v(rstd)}
              v_add_f32 {v(rstd)}, {hex(f2u(1e-5))}, {v(rstd)}
              v_rsq_f32 {v(rstd)}, {v(rstd)}""")
    finish_stats(SUM, SQ, MEAN, RSTD, TM)
    A(f"v_add_u32 v14, 1, v14\nv_readfirstlane_b32 {sNON}, v14")
    A(f"""s_add_u32 s62, s68, {5*16384}
          v_lshl_add_u32 v13, v10, 2, s62
          ds_write_b32 v13, {v(MEAN)}
          ds_write_b32 v13, {v(RSTD)} offset:128
          v_lshl_add_u32 v13, v11, 4, s62""")
    A.wait(A.last_lg())
    MR, RR = T, T + 16
    for q in range(4):
        A(f"ds_read_b128 {v(MR+4*q,4)}, v13 offset:{q*32}")
        A(f"ds_read_b128 {v(RR+4*q,4)}, v13 offset:{128+q*32}")
    A(f"s_mov_b32 s62, {hex(f2u(1e-6))}\ns_mov_b32 s63, {hex(f2u(1.4426950408889634))}")
    def phi_pair(src0, src1, dst, t0, t1):
        A(f"""v_mul_f32 {v(t0)}, s63, {v(src0)}
              v_mul_f32 {v(t1)}, s63, {v(src1)}
              v_exp_f32 {v(t0)}, {v(t0)} clamp
              v_exp_f32 {v(t1)}, {v(t1)} clamp
              v_max_f32 {v(src0)}, s62, {v(src0)}
              v_max_f32 {v(src1)}, s62, {v(src1)}
              v_add_f32 {v(src0)}, {v(src0)}, {v(t0)}
              v_add_f32 {v(src1)}, {v(src1)}, {v(t1)}
              v_cvt_pk_bf16_f32 {v(dst)}, {v(src0)}, {v(src1)}""")
    PK, PV = T + 44, T + 52
    for r in range(0, 16, 2):
        for e in (r, r + 1):
            A(f"v_fma_f32 {v(ACC[0]+e)}, -{v(MR+e)}, {v(CSK)}, {v(ACC[0]+e)}")
            A(f"v_fma_f32 {v(ACC[1]+e)}, -{v(MR+e)}, {v(CSV)}, {v(ACC[1]+e)}")
            A(f"v_fma_f32 {v(ACC[0]+e)}, {v(ACC[0]+e)}, {v(RR+e)}, s62")
            A(f"v_mul_f32 {v(ACC[1]+e)}, {v(ACC[1]+e)}, {v(RR+e)}")
        phi_pair(ACC[0] + r, ACC[0] + r + 1, PK + r // 2, TM, TM + 1)
        A(f"v_cvt_pk_bf16_f32 {v(PV+r//2)}, {v(ACC[1]+r)}, {v(ACC[1]+r+1)}")
    A("s_mov_b32 exec_lo, 0x10000000\ns_mov_b32 exec_hi, 0x10000000")
    for r in range(8): A(f"v_mov_b32 {v(PV+r)}, {sONE}")
    A("s_mov_b64 exec, -1")
    A(f"{MF} {v(ACC[2],16)}, {v(PK,4)}, {v(PV,4)}, 0")
    A(f"{MF} {v(ACC[2],16)}, {v(PK+4,4)}, {v(PV+4,4)}, {v(ACC[2],16)}")
    A(f"""s_add_u32 s62, s68, {6*16384}
          v_lshl_add_u32 v13, v1, 4, s62""")
    for q in range(4): A(f"ds_write_b128 v13, {v(ACC[2]+4*q,4)} offset:{q*1024}")
    A(f"""s_lshl_b32 s62, {sW}, 10
          s_add_u32 s62, s62, {6*16384}
          v_lshl_add_u32 v13, v1, 4, s62""")
    A.barrier(A.last_lg())
    for ww in range(4): A(f"ds_read_b128 {v(T+4*ww,4)}, v13 offset:{ww*4096}")
    A("s_mov_b32 s44, 0x07060500\ns_mov_b32 s45, 0x07060501\ns_mov_b32 s46, 0x07060502\ns_mov_b32 s47, 0x07060503")
    A(f"""s_lshl_b32 s62, {sJ}, 4
          s_add_u32 s62, s62, {sRB}
          s_lshl_b32 s62, s62, 2
          s_add_u32 s62, s62, {sW}
          s_lshl_b32 s62, s62, 10
          s_add_u32 s62, s62, {WS_KVP}
          v_lshlrev_b32 v12, 4, v1""")
    for d in range(4):
        A(f"v_add_f32 {v(T+d)}, {v(T+d)}, {v(T+4+d)}\nv_add_f32 {v(T+8+d)}, {v(T+8+d)}, {v(T+12+d)}")
    for d in range(4):
        A(f"v_add_f32 {v(T+d)}, {v(T+d)}, {v(T+8+d)}")
        A(f"v_perm_b32 {v(T+d)}, {v(T+d)}, v14, s{44+d}")
    A(f"buffer_store_dwordx4 {v(T,4)}, v12, {SWS}, s62 offen sc1")
    stamp()
    A(f"""v_lshrrev_b32 v5, 3, v1
          v_and_b32 v6, 7, v1
          v_bfe_u32 v7, v1, 4, 1
          v_lshlrev_b32 v7, 2, v7
          v_xor_b32 v6, v6, v7
          v_mul_u32_u24 v5, 896, v5
          v_lshl_add_u32 v2, v6, 4, v5
          v_lshrrev_b32 v5, 4, v1
          v_and_b32 v6, 15, v1
          v_lshlrev_b32 v7, 2, v5
          v_xor_b32 v6, v6, v7
          v_mul_u32_u24 v5, 3584, v5
          v_lshl_add_u32 v3, v6, 4, v5""")
    A(f"""s_lshl_b32 s65, {sCT}, 7
          s_mul_i32 s62, {sW}, {8*896}
          s_add_u32 s65, s65, s62
          s_lshl_b32 s66, {sW}, 10""")
    def wo_issue():
        fs = []
        for i in range(15):
            def f(i=i):
                A(f"s_add_u32 s62, s65, {i*4*8*896}")
                if i == 14:
                    A(f"s_mov_b32 m0, {L_WO + 56*1024}")
                    wo_tok[0] = A(f"buffer_load_dwordx4 v2, {SWO}, s62 offen lds")
                else:
                    dma("v2", SWO, "s62", "s66", L_WO + i * 4096)
            fs.append(f)
        return fs
    wo_tok = [None]
    A.barrier(wq_tok[0])
    ONES = T + 60
    for d in range(4): A(f"v_mov_b32 {v(ONES+d)}, {sONE}")
    def rdq(s):
        wf = T + (s % 8) * 4
        A(f"ds_read_b64_tr_b16 {v(wf,2)}, v9 offset:{8192+s*1024}")
        A(f"ds_read_b64_tr_b16 {v(wf+2,2)}, v9 offset:{8192+s*1024+256}")
    for s in range(4): rdq(s)
    fill = wo_issue()
    for s in range(28):
        wf = T + (s % 8) * 4
        A(f"{MF} {v(ACC[0],16)}, {v(wf,4)}, {v(XF+4*s,4)}, {'0' if s == 0 else v(ACC[0],16)}")
        if s + 4 < 28: rdq(s + 4)
        A(f"{MF} {v(ACC[1],16)}, {v(wf,4)}, {v(ONES,4)}, {'0' if s == 0 else v(ACC[1],16)}")
        if s < len(fill): fill[s]()
    A(f"s_mov_b32 s62, {hex(f2u(1e-6))}\ns_mov_b32 s63, {hex(f2u(1.4426950408889634))}")
    PQ = T + 44
    for r in range(0, 16, 2):
        for e in (r, r + 1):
            A(f"v_fma_f32 {v(ACC[0]+e)}, -{v(MEAN)}, {v(ACC[1]+e)}, {v(ACC[0]+e)}")
            A(f"v_fma_f32 {v(ACC[0]+e)}, {v(ACC[0]+e)}, {v(RSTD)}, s62")
        phi_pair(ACC[0] + r, ACC[0] + r + 1, PQ + r // 2, TM, TM + 1)
    A(f"s_mov_b32 exec_lo, 0\nv_mov_b32 {v(PQ+6)}, 0\nv_mov_b32 {v(PQ+7)}, 0\ns_mov_b64 exec, -1")
    stamp()
    A(f"""s_lshl_b32 s65, {sJ}, 16
          s_lshl_b32 s62, {sW}, 10
          s_add_u32 s65, s65, s62
          s_add_u32 s65, s65, {WS_KVP}
          s_mov_b32 s44, 0x0c0c0400
          s_mov_b32 s45, 0x04000c0c
          s_mov_b32 s64, 0""")
    A.fence()
    A.label("Lh1")
    for p in range(16):
        A(f"""s_add_u32 s62, {sRB}, {p}
              s_and_b32 s62, s62, 15
              s_lshl_b32 s62, s62, 12
              s_add_u32 s62, s62, s65""")
        A(f"buffer_load_dwordx4 {v(XF+4*p,4)}, v12, {SWS}, s62 offen sc1")
    BAD = TM + 2
    for p in range(16):
        b = XF + 4 * p
        A(f"v_perm_b32 {v(TM)}, {v(b+1)}, {v(b)}, s44")
        A(f"v_perm_b32 {v(TM+1)}, {v(b+3)}, {v(b+2)}, s45")
        A(f"v_or_b32 {v(TM)}, {v(TM)}, {v(TM+1)}")
        if p == 0: A(f"v_xor_b32 {v(BAD)}, {v(TM)}, v14")
        else:
            A(f"v_xor_b32 {v(TM)}, {v(TM)}, v14\nv_or_b32 {v(BAD)}, {v(BAD)}, {v(TM)}")
            for d in range(4):
                A(f"v_add_f32 {v(T+d)}, {v(XF+d) if p == 1 else v(T+d)}, {v(b+d)}")
    A(f"""v_cmp_ne_u32 vcc, 0, {v(BAD)}
          s_cbranch_vccz Lh1d
          s_add_u32 s64, s64, 1
          s_cmp_lt_u32 s64, {SPIN_MAX//8}
          s_cbranch_scc1 Lh1""")
    A.label("Lh1d")
    A.fence()
    stamp()
    A(f"v_cvt_pk_bf16_f32 {v(T)}, {v(T)}, {v(T+1)}\nv_cvt_pk_bf16_f32 {v(T+1)}, {v(T+2)}, {v(T+3)}")
    A(f"""s_cmp_eq_u32 {sW}, 3
          s_cselect_b32 exec_hi, -1, 0
          s_mov_b32 exec_lo, 0
          v_mov_b32 {v(T)}, 0
          v_mov_b32 {v(T+1)}, 0
          s_mov_b64 exec, -1
          s_lshr_b32 s62, {sW}, 1
          s_lshl_b32 s62, s62, 10
          s_and_b32 s63, {sW}, 1
          s_lshl_b32 s63, s63, 3
          s_add_u32 s62, s62, s63
          s_add_u32 s62, s62, {L_MISC}
          v_add_u32 v13, s62, v12
          ds_write_b64 v13, {v(T,2)}
          v_add_u32 v13, {L_MISC}, v12""")
    A.barrier(A.last_lg())
    A(f"ds_read_b128 {v(T,4)}, v13\nds_read_b128 {v(T+4,4)}, v13 offset:1024")
    A(f"{MF} {v(ACC[0],16)}, {v(T,4)}, {v(PQ,4)}, 0")
    A(f"{MF} {v(ACC[0],16)}, {v(T+4,4)}, {v(PQ+4,4)}, {v(ACC[0],16)}")
    A(f"""s_lshl_b32 s65, {sRB}, 2
          s_add_u32 s65, s65, {sW}
          s_lshl_b32 s66, s65, 4
          s_add_u32 s66, s66, {sJ}
          s_lshl_b32 s65, s66, 11
          s_add_u32 s65, s65, {WS_O}
          s_lshl_b32 s66, s66, 2""")
    A(f"""v_mov_b32 {v(TM)}, {v(ACC[0]+12)}
          v_mov_b32 {v(TM+1)}, {v(ACC[0]+12)}
          v_permlane32_swap_b32 {v(TM)}, {v(TM+1)}
          v_add_f32 {v(TM+1)}, {hex(f2u(1e-6))}, {v(TM+1)}
          v_rcp_f32 {v(TM+1)}, {v(TM+1)}""")
    for r in range(0, 16, 2):
        A(f"""v_mul_f32 {v(ACC[0]+r)}, {v(ACC[0]+r)}, {v(TM+1)}
              v_mul_f32 {v(ACC[0]+r+1)}, {v(ACC[0]+r+1)}, {v(TM+1)}
              v_cvt_pk_bf16_f32 {v(T+8+r//2)}, {v(ACC[0]+r)}, {v(ACC[0]+r+1)}""")
    A(f"s_mov_b32 exec_lo, 0\nv_mov_b32 {v(T+14)}, 0\nv_mov_b32 {v(T+15)}, 0\ns_mov_b64 exec, -1")
    A(f"buffer_store_dwordx4 {v(T+8,4)}, v12, {SWS}, s65 offen sc1")
    t = A(f"buffer_store_dwordx4 {v(T+12,4)}, v12, {SWS}, s65 offen offset:1024 sc1")
    A.wait(t)
    setflag("s66")
    stamp()
    A(f"s_cmp_ge_u32 {sJ}, 14\ns_cbranch_scc1 Lfin")
    A(f"""s_lshl_b32 s65, {sJ}, 8
          s_mul_i32 s62, {sW}, {4*3584}
          s_add_u32 s65, s65, s62
          s_lshl_b32 s66, {sW}, 10""")
    A(f"""v_bfe_u32 v7, v1, 2, 2
          v_lshl_add_u32 v8, v11, 2, v7
          v_bfe_u32 v13, v1, 4, 1
          v_lshlrev_b32 v13, 5, v13
          v_and_b32 v9, 3, v1
          v_lshl_add_u32 v13, v9, 3, v13
          v_xor_b32 v9, {sW}, v7
          v_lshl_add_u32 v4, v9, 6, v13
          v_lshl_add_u32 v4, v8, 8, v4
          v_add_u32 v4, {L_W1S}, v4
          v_lshrrev_b32 v9, 1, v7
          v_lshl_add_u32 v5, v9, 6, v13
          v_lshl_add_u32 v5, v8, 7, v5
          v_xor_b32 v6, 64, v5""")
    for hlf in range(2):
        if hlf: A.barrier(A.last_lg())
        for i in range(14):
            A(f"s_add_u32 s62, s65, {(hlf*224 + i*16)*3584}")
            t = dma("v3", SW1, "s62", "s66", L_W1S + i * 4096)
        A.barrier(t)
        for s in range(14):
            b = XF + (hlf * 14 + s) * 4
            A(f"ds_read_b64_tr_b16 {v(b,2)}, v4 offset:{s*4096}")
            A(f"ds_read_b64_tr_b16 {v(b+2,2)}, v4 offset:{s*4096+2048}")
    A(f"""s_lshl_b32 s62, {sJ}, 8
          s_lshl_b32 s63, {sW}, 6
          s_add_u32 s62, s62, s63
          v_lshlrev_b32 v13, 3, v11""")
    for q in range(4): A(f"buffer_load_dwordx2 {v(T+2*q,2)}, v13, {SB1}, s62 offen offset:{q*16}")
    A(f"""s_lshl_b32 s62, {sCT}, 7
          s_and_b32 s63, {sW}, 1
          s_lshl_b32 s63, s63, 6
          s_add_u32 s62, s62, s63""")
    for q in range(4): A(f"buffer_load_dwordx2 {v(T+16+2*q,2)}, v13, {SB2}, s62 offen offset:{q*16}")
    for s in range(28):
        A(f"{MF} {v(ACC[2],16)}, {v(XF+4*s,4)}, {v(ONES,4)}, {'0' if s == 0 else v(ACC[2],16)}")
    for d in range(8):
        A(f"v_lshlrev_b32 {v(ACC[3]+2*d)}, 16, {v(T+d)}\nv_and_b32 {v(ACC[3]+2*d+1)}, 0xffff0000, {v(T+d)}")
        A(f"v_accvgpr_read_b32 {v(TM)}, {a(XR+d)}")
        A(f"v_lshlrev_b32 {v(ACC[0]+2*d)}, 16, {v(TM)}\nv_and_b32 {v(ACC[0]+2*d+1)}, 0xffff0000, {v(TM)}")
        A(f"v_accvgpr_write_b32 {a(XR+8+d)}, {v(T+16+d)}")
    A.barrier(A.last_lg())
    stamp()
    A(f"""s_and_b32 s65, {sW}, 1
          s_lshl_b32 s65, s65, 1
          s_add_u32 s65, s65, {sHF}
          s_lshl_b32 s66, {sRB}, 2
          s_add_u32 s65, s65, s66
          s_lshl_b32 s65, s65, 4
          s_lshr_b32 s66, {sW}, 1
          s_lshl_b32 s66, s66, 3
          s_add_u32 s65, s65, s66
          s_lshl_b32 s67, s65, 2
          v_and_b32 v7, 7, v1
          v_lshlrev_b32 v7, 2, v7""")
    poll("v7", "s67")
    stamp()
    A(f"""s_lshl_b32 s65, s65, 11
          s_add_u32 s65, s65, {WS_O}
          s_and_b32 s66, {sW}, 1
          s_lshl_b32 s66, s66, 15
          s_lshr_b32 s62, {sW}, 1
          s_lshl_b32 s62, s62, 14
          s_add_u32 s66, s66, s62""")
    for i in range(16):
        A(f"s_add_u32 s62, s65, {i*1024}")
        t = dma("v12", SWS, "s62", "s66", L_O + i * 1024, "sc1")
    A(f"""s_lshr_b32 s62, {sW}, 1
          s_lshl_b32 s62, s62, 15
          s_add_u32 s62, s62, {L_O}
          v_add_u32 v7, s62, v12
          s_and_b32 s62, {sW}, 1
          s_lshl_b32 s62, s62, 6
          v_xor_b32 v8, s62, v5""")
    A.barrier(t, wo_tok[0])
    stamp()
    def rd2(s):
        f = T + (s % 4) * 8
        row = 28 * (s // 2) + 16 * (s % 2)
        A(f"ds_read_b128 {v(f,4)}, v7 offset:{s*1024}")
        A(f"ds_read_b64_tr_b16 {v(f+4,2)}, v8 offset:{L_WO+row*128}")
        A(f"ds_read_b64_tr_b16 {v(f+6,2)}, v8 offset:{L_WO+row*128+1024}")
    for s in range(3): rd2(s)
    for s in range(32):
        f = T + (s % 4) * 8
        if s + 3 < 32: rd2(s + 3)
        A(f"{MF} {v(ACC[0],16)}, {v(f+4,4)}, {v(f,4)}, {v(ACC[0],16)}")
    A(f"""s_lshr_b32 s65, {sW}, 1
          s_lshl_b32 s65, s65, 1
          s_add_u32 s65, s65, {sHF}
          s_lshl_b32 s66, {sRB}, 2
          s_add_u32 s65, s65, s66
          s_lshl_b32 s66, {sCT}, 1
          s_and_b32 s62, {sW}, 1
          s_add_u32 s66, s66, s62
          s_mul_i32 s67, s65, 14
          s_add_u32 s67, s67, s66
          s_lshl_b32 s68, s67, 11
          s_add_u32 s68, s68, {WS_H}
          s_lshl_b32 s67, s67, 8
          s_add_u32 s67, s67, {WS_ST}
          s_lshl_b32 s65, s65, 4
          s_add_u32 s65, s65, s66
          s_lshl_b32 s65, s65, 2
          s_add_u32 s65, s65, 0x1000
          v_mov_b32 {v(TM)}, 0
          v_mov_b32 {v(TM+1)}, 0""")
    for d in range(8):
        A(f"v_cvt_pk_bf16_f32 {v(T+d)}, {v(ACC[0]+2*d)}, {v(ACC[0]+2*d+1)}")
    A(f"buffer_store_dwordx4 {v(T,4)}, v12, {SWS}, s68 offen sc1")
    A(f"buffer_store_dwordx4 {v(T+4,4)}, v12, {SWS}, s68 offen offset:1024 sc1")
    for d in range(8):
        A(f"v_dot2c_f32_bf16 {v(TM)}, {sONE}, {v(T+d)}\nv_dot2c_f32_bf16 {v(TM+1)}, {v(T+d)}, {v(T+d)}")
    A(f"""v_permlane32_swap_b32 {v(TM)}, {v(TM+1)}
          v_add_f32 {v(TM)}, {v(TM)}, {v(TM+1)}
          v_lshlrev_b32 v13, 3, v10
          v_lshl_add_u32 v13, v11, 2, v13""")
    t = A(f"buffer_store_dword {v(TM)}, v13, {SWS}, s67 offen sc1")
    HR = 224
    for d in range(8):
        A(f"v_accvgpr_read_b32 {v(TM+2)}, {a(XR+8+d)}")
        A(f"v_lshlrev_b32 {v(TM+3)}, 16, {v(TM+2)}\nv_and_b32 {v(TM+2)}, 0xffff0000, {v(TM+2)}")
        A(f"v_add_f32 {v(TM+3)}, {v(TM+3)}, {v(ACC[0]+2*d)}\nv_add_f32 {v(TM+2)}, {v(TM+2)}, {v(ACC[0]+2*d+1)}")
        A(f"v_accvgpr_write_b32 {a(HR+2*d)}, {v(TM+3)}\nv_accvgpr_write_b32 {a(HR+2*d+1)}, {v(TM+2)}")
    A.wait(t)
    setflag("s65")
    stamp()
    A(f"""s_cmp_eq_u32 s2, 0
          s_cselect_b32 s62, 0, 0x7ffffff0
          s_mov_b64 exec, 1
          buffer_store_dword v14, v15, {SWS}, s62 offen sc1
          s_mov_b64 exec, -1""")
    A(f"""s_mul_i32 s69, {sW}, {448*896}
          s_lshl_b32 s62, {sCT}, 7
          s_add_u32 s69, s69, s62
          s_lshl_b32 s59, {sW}, 13
          s_add_u32 s59, s59, {L_STG}
          v_add_u32 v5, s59, v5
          v_add_u32 v6, s59, v6""")
    def w2_stage(g):
        A.wait(A.last_lg())
        for i in range(8):
            A(f"s_add_u32 s62, s69, {(g*64+i*8)*896}")
            t = dma("v2", SW2, "s62", "s59", i * 1024)
        A.wait(t)
        for u in range(4):
            s = g * 4 + u
            for nt in range(2):
                A(f"ds_read_b64_tr_b16 {a(s*8+nt*4,2)}, v{5+nt} offset:{u*2048}")
                A(f"ds_read_b64_tr_b16 {a(s*8+nt*4+2,2)}, v{5+nt} offset:{u*2048+1024}")
    for g in range(3): w2_stage(g)
    stamp()
    A(f"""s_lshl_b32 s67, {sRB}, 8
          s_add_u32 s67, s67, 0x1000
          v_and_b32 v7, 15, v1
          v_min_u32 v7, 13, v7
          v_and_b32 v8, 48, v1
          v_add_lshl_u32 v7, v7, v8, 2""")
    A.barrier(A.last_lg())
    poll("v7", "s67")
    stamp()
    A(f"""s_lshl_b32 s65, {sRB}, 2
          s_add_u32 s66, s65, {sW}
          s_mul_i32 s66, s66, {14*256}
          s_add_u32 s66, s66, {WS_ST}
          v_lshlrev_b32 v13, 3, v1
          s_mul_i32 s65, s65, {28*1024}
          s_mul_i32 s62, {sW}, {7*1024}
          s_add_u32 s65, s65, s62
          s_add_u32 s65, s65, {WS_H}
          s_mul_i32 s67, {sW}, {7*1024}""")
    for i in range(7): A(f"buffer_load_dwordx2 {v(T+2*i,2)}, v13, {SWS}, s66 offen offset:{i*512} sc1")
    htok = []
    for mt in range(4):
        for i in range(7):
            A(f"s_add_u32 s62, s65, {(mt*28+i)*1024}")
            t = dma("v12", SWS, "s62", "s67", (mt * 28 + i) * 1024, "sc1")
        htok.append(t)
    for i in range(1, 7):
        A(f"v_add_f32 {v(T)}, {v(T)}, {v(T+2*i)}\nv_add_f32 {v(T+1)}, {v(T+1)}, {v(T+2*i+1)}")
    for r in (T, T + 1):
        A(f"v_mov_b32 {v(TM)}, {v(r)}\nv_permlane32_swap_b32 {v(r)}, {v(TM)}\nv_add_f32 {v(r)}, {v(r)}, {v(TM)}")
    finish_stats(T, T + 1, T + 2, T + 3, TM)
    A(f"""s_lshl_b32 s62, {sW}, 8
          s_add_u32 s62, s62, {L_MISC}
          v_lshl_add_u32 v13, v10, 3, s62
          ds_write_b64 v13, {v(T+2,2)}
          v_lshlrev_b32 v13, 3, v10
          v_add_u32 v13, {L_MISC}, v13
          v_add_u32 v7, {56*1024}, v12""")
    A(f"""s_mul_i32 s65, {sRB}, {4*112}
          s_lshl_b32 s62, {sJ}, 3
          s_add_u32 s65, s65, s62
          s_lshl_b32 s62, {sW}, 1
          s_add_u32 s65, s65, s62
          s_lshl_b32 s65, s65, 10
          s_add_u32 s65, s65, {WS_H1}
          s_lshl_b32 s66, {sRB}, 7
          s_lshl_b32 s62, {sJ}, 2
          s_add_u32 s66, s66, s62
          s_add_u32 s66, s66, {sW}
          s_lshl_b32 s66, s66, 2
          s_add_u32 s66, s66, 0x2000""")
    STT = T + 32
    PKD = T + 48
    E0 = T + 40
    def epi3(mt):
        acc = ACC[mt & 1]; mean, rstd = STT + 2 * mt, STT + 2 * mt + 1
        pk = PKD + (mt & 1) * 8
        fs = []
        for r in range(0, 16, 2):
            for e in (r, r + 1):
                fs.append(lambda e=e: A(f"v_fma_f32 {v(acc+e)}, -{v(mean)}, {v(ACC[2]+e)}, {v(acc+e)}"))
            for e in (r, r + 1):
                fs.append(lambda e=e: A(f"v_fma_f32 {v(acc+e)}, {v(acc+e)}, {v(rstd)}, {v(ACC[3]+e)}"))
            for e in (r, r + 1):
                fs.append(lambda e=e: A(f"v_max_f32 {v(acc+e)}, 0, {v(acc+e)}"))
            for e in (r, r + 1):
                fs.append(lambda e=e: A(f"v_mul_f32 {v(acc+e)}, {v(acc+e)}, {v(acc+e)}"))
            fs.append(lambda r=r: A(f"v_cvt_pk_bf16_f32 {v(pk+r//2)}, {v(acc+r)}, {v(acc+r+1)}"))
            if r == 6:
                fs.append(lambda: A(f"s_add_u32 s58, s65, {mt*112*1024}\nbuffer_store_dwordx4 {v(pk,4)}, v12, {SWS}, s58 offen sc1"))
            if r == 14:
                def g(): sttok[mt] = A(f"buffer_store_dwordx4 {v(pk+4,4)}, v12, {SWS}, s58 offen offset:1024 sc1")
                fs.append(g)
        return fs
    sttok = {}
    def rd3(idx):
        base, off = ("v12", idx * 1024) if idx < 56 else ("v7", (idx - 56) * 1024)
        A(f"ds_read_b128 {v(T+(idx%8)*4,4)}, {base} offset:{off}")
    PD = 5
    for mt in range(4):
        if mt == 0:
            A.barrier(htok[0], A.last_lg())
            stamp()
            for k in range(4): A(f"ds_read_b64 {v(STT+2*k,2)}, v13 offset:{k*256}")
            for k in range(PD): rd3(k)
        mains = []
        for s in range(28):
            def m(s=s):
                idx = mt * 28 + s
                nxt = idx + PD
                if nxt < 112:
                    if nxt % 28 == 0: A.barrier(htok[nxt // 28])
                    rd3(nxt)
                A(f"{MF} {v(ACC[mt&1],16)}, {v(XF+4*s,4)}, {v(T+(idx%8)*4,4)}, {'0' if s == 0 else v(ACC[mt&1],16)}")
            mains.append(m)
        fl = epi3(mt - 1) if mt else []
        for f in interleave(mains, fl, lead=3): f()
        if mt == 3:
            pass
        if mt == 2:
            A.wait(sttok[1]); setflag("s66")
    for f in epi3(3): f()
    A.wait(sttok[3])
    A("s_add_u32 s66, s66, 256")
    setflag("s66")
    stamp()
    for g in range(3, 7): w2_stage(g)
    for tI in range(4):
        A(f"s_cmp_eq_u32 {sW}, {tI}\ns_cselect_b32 s62, -1, 0")
        for r in range(16):
            A(f"v_accvgpr_read_b32 {v(TM+(r&1))}, {a(HR+r)}\nv_and_b32 {v(ACC[tI]+r)}, s62, {v(TM+(r&1))}")
    A(f"""s_lshl_b32 s67, {sRB}, 7
          s_mul_i32 s62, {sW}, 14
          s_add_u32 s67, s67, s62
          s_lshl_b32 s67, s67, 2
          s_add_u32 s67, s67, 0x2000
          v_min_u32 v7, 13, v1
          v_lshlrev_b32 v7, 2, v7
          s_lshl_b32 s65, {sRB}, 2
          s_add_u32 s65, s65, {sHF}
          s_mul_i32 s65, s65, 112
          s_mul_i32 s62, {sW}, 28
          s_add_u32 s65, s65, s62
          s_lshl_b32 s65, s65, 10
          s_add_u32 s65, s65, {WS_H1}""")
    A(f"""s_mul_i32 s62, {sW}, {8*1088}
          v_add_u32 v8, s62, v12
          v_and_b32 v9, 7, v0
          v_mul_u32_u24 v9, 1088, v9
          v_lshrrev_b32 v13, 3, v0
          v_lshl_add_u32 v9, v13, 4, v9
          v_mul_u32_u24 v13, 896, v13
          v_and_b32 v3, 7, v0
          v_lshl_add_u32 v3, v3, 4, v13
          s_lshl_b32 s68, {sRB}, 2
          s_add_u32 s68, s68, {sHF}
          s_mul_i32 s68, s68, {32*896}
          s_lshl_b32 s62, {sCT}, 7
          s_add_u32 s68, s68, s62""")
    A.barrier(A.last_lg())
    stamp()
    for p in range(2):
        poll("v7", "s67")
        if p == 0: stamp()
        for s in range(28):
            if s % 4 == 0: A(f"s_add_u32 s62, s65, {(p*224+s)*1024}")
            A(f"buffer_load_dwordx4 {v(XF+4*s,4)}, v12, {SWS}, s62 offen offset:{(s%4)*1024} sc1")
        for s in range(28):
            for nt in range(2):
                A(f"{MF} {v(ACC[2*p+nt],16)}, {a(s*8+nt*4,4)}, {v(XF+4*s,4)}, {v(ACC[2*p+nt],16)}")
        A("s_add_u32 s67, s67, 256")
        RB_ = p * 36864
        for nt in range(2):
            for q in range(4):
                A(f"ds_write_b128 v8, {v(ACC[2*p+nt]+4*q,4)} offset:{RB_+(nt*4+q)*1088}")
        A.barrier(A.last_lg())
        for ww in range(4):
            A(f"ds_read_b128 {v(T+8*ww,4)}, v9 offset:{RB_+ww*8*1088}")
            A(f"ds_read_b128 {v(T+8*ww+4,4)}, v9 offset:{RB_+ww*8*1088+512}")
        for d in range(8):
            A(f"v_add_f32 {v(T+d)}, {v(T+d)}, {v(T+8+d)}\nv_add_f32 {v(T+16+d)}, {v(T+16+d)}, {v(T+24+d)}")
        for d in range(8): A(f"v_add_f32 {v(T+d)}, {v(T+d)}, {v(T+16+d)}")
        for d in range(4): A(f"v_cvt_pk_bf16_f32 {v(T+32+d)}, {v(T+2*d)}, {v(T+2*d+1)}")
        A(f"buffer_store_dwordx4 {v(T+32,4)}, v3, {SOUT}, s68 offen")
        A(f"s_add_u32 s68, s68, {64*896}")
    stamp()
    A.label("Lfin")
    if stamps:
        A.raw("    s_waitcnt lgkmcnt(0)")
        A(f"s_lshl_b32 s62, s2, 8\ns_add_u32 s62, s62, {WS_STAMP}\ns_cmp_lg_u32 {sW}, 0\ns_cbranch_scc1 Lend\ns_mov_b64 exec, 1")
        for i in range(ns[0]):
            A(f"v_mov_b32 v2, s{sreg(i)}\nv_mov_b32 v3, s{sreg(i)+1}\nbuffer_store_dwordx2 v[2:3], v15, {SWS}, s62 offen offset:{i*8}")
    A.label("Lend")
    A.raw("    s_endpgm")
    assert ns[0] <= 21, ns[0]
    k = NAME + "_kernel"
    txt = HDR + f"""; @launch grid=(256,1,1) block=(256,1,1) lds=163840
.amdgcn_target "amdgcn-amd-amdhsa--gfx950"
.text
.globl {k}
.p2align 8
.type {k},@function
{k}:
""" + A.text() + f""".section .rodata,"a"
.p2align 6
.amdhsa_kernel {k}
  .amdhsa_next_free_vgpr 512
  .amdhsa_next_free_sgpr 102
  .amdhsa_accum_offset 256
  .amdhsa_group_segment_fixed_size 0
  .amdhsa_kernarg_size 88
  .amdhsa_user_sgpr_count 2
  .amdhsa_user_sgpr_kernarg_segment_ptr 1
  .amdhsa_system_sgpr_workgroup_id_x 1
.end_amdhsa_kernel
"""
    return txt

import struct
def f2u(x): return struct.unpack('<I', struct.pack('<f', x))[0]

if __name__ == "__main__":
    open("k1.s", "w").write(gen(False))
    open("k1_st.s", "w").write(gen(True))
```

```python
import re

def regs_of(op):
    op = op.strip()
    neg = op.lstrip('-')
    m = re.fullmatch(r'(?:abs\(|\|)?([vas])(\d+)(?:\)|\|)?', neg)
    if m: return [m.group(1) + m.group(2)]
    m = re.fullmatch(r'([vas])\[(\d+):(\d+)\]', neg)
    if m: return [m.group(1) + str(i) for i in range(int(m.group(2)), int(m.group(3)) + 1)]
    if neg in ('vcc', 'exec', 'm0', 'scc'): return [neg]
    if neg in ('vcc_lo', 'vcc_hi'): return ['vcc']
    if neg in ('exec_lo', 'exec_hi'): return ['exec']
    return []

TRANS = ('v_exp_f32', 'v_log_f32', 'v_rcp_f32', 'v_rsq_f32', 'v_sqrt_f32', 'v_sin_f32', 'v_cos_f32')

class Ins:
    __slots__ = ('text', 'op', 'kind', 'w', 'r', 'srcC', 'srcAB', 'passes', 'wide_store', 'data', 'slot', 'isdma')
    def __init__(self, text):
        self.text = text
        t = text.split(';')[0].strip()
        parts = t.split(None, 1)
        self.op = parts[0]
        rest = parts[1] if len(parts) > 1 else ''
        rest = re.sub(r'\s+(op_sel|op_sel_hi|neg_lo|neg_hi|quad_perm):\[[^\]]*\]', '', rest)
        ops = [o.strip() for o in rest.split(',')] if rest else []
        mods = []
        if ops:
            sp = ops[-1].split()
            ops[-1] = sp[0] if sp else ''
            mods = sp[1:]
        op = self.op
        self.w = []; self.r = []; self.srcC = []; self.srcAB = []; self.passes = 0
        self.wide_store = False; self.data = []; self.isdma = False
        R = lambda i: regs_of(ops[i]) if i < len(ops) else []
        if op.startswith('v_mfma'):
            self.kind = 'mfma'
            self.w = R(0); self.srcAB = R(1) + R(2); self.srcC = R(3); self.r = self.srcAB + self.srcC
            self.passes = 8 if '32x32x16' in op else 4
        elif op.startswith('v_'):
            self.kind = 'valu'
            if op.startswith('v_cmp'):
                self.w = R(0); self.r = R(1) + R(2)
            elif op.startswith('v_permlane'):
                self.w = R(0) + R(1); self.r = R(0) + R(1)
            elif op.startswith(('v_add_co', 'v_sub_co', 'v_addc_co', 'v_subb_co')):
                self.w = R(0) + R(1); self.r = sum((R(i) for i in range(2, len(ops))), [])
            elif op == 'v_nop':
                pass
            else:
                self.w = R(0); self.r = sum((R(i) for i in range(1, len(ops))), [])
                if op.startswith(('v_fmac', 'v_dot2c', 'v_writelane')) or 'dpp' in op or 'sdwa' in op: self.r = self.r + R(0)
        elif op.startswith('ds_'):
            self.kind = 'ds'
            if op.startswith('ds_read') or op.startswith('ds_bpermute') or op.startswith('ds_swizzle'):
                self.w = R(0); self.r = sum((R(i) for i in range(1, len(ops))), [])
            else:
                self.r = sum((R(i) for i in range(len(ops))), [])
        elif op.startswith(('buffer_', 'global_')):
            self.kind = 'vmem'
            if 'lds' in mods or op.startswith('global_load_lds'):
                self.isdma = True
                self.r = sum((R(i) for i in range(len(ops))), []) + ['m0']
            elif '_load' in op:
                self.w = R(0); self.r = sum((R(i) for i in range(1, len(ops))), [])
            elif op.startswith('buffer_store'):
                self.data = R(0); self.r = sum((R(i) for i in range(len(ops))), [])
                self.wide_store = op.endswith(('x3', 'x4'))
            elif op.startswith('global_store'):
                self.data = R(1); self.r = sum((R(i) for i in range(len(ops))), [])
                self.wide_store = op.endswith(('x3', 'x4'))
            else:
                self.r = sum((R(i) for i in range(len(ops))), [])
        elif op.startswith(('s_load', 's_memrealtime', 's_memtime', 's_buffer_load')):
            self.kind = 'smem'
            self.w = R(0); self.r = sum((R(i) for i in range(1, len(ops))), [])
        elif op.startswith('s_'):
            self.kind = 'salu'
            if op.startswith(('s_cmp', 's_cbranch', 's_branch', 's_barrier', 's_waitcnt', 's_nop', 's_sleep', 's_setprio', 's_endpgm', 's_bitcmp')):
                self.r = sum((R(i) for i in range(len(ops))), [])
                if op.startswith('s_cbranch_vcc'): self.r = ['vcc']
            else:
                self.w = R(0); self.r = sum((R(i) for i in range(1, len(ops))), [])
                if 'saveexec' in op: self.w = self.w + ['exec']
        else:
            raise ValueError('unknown instruction: ' + text)

def need_gap(p, c):
    g = 0
    pw, cr, cw = set(p.w), set(c.r), set(c.w)
    isv = lambda s: {x for x in s if x[0] in 'va' and x not in ('vcc',)}
    iss = lambda s: {x for x in s if x[0] == 's' or x == 'vcc'}
    if p.kind == 'valu':
        if c.kind == 'mfma' and isv(pw) & cr: g = max(g, 3 if p.op.startswith('v_dot') else 2)
        if c.kind == 'vmem' and iss(pw) & cr: g = max(g, 5)
        if c.kind == 'valu' and iss(pw) & cr: g = max(g, 4 if c.op.startswith(('v_readlane', 'v_writelane')) else 2)
        if c.kind == 'valu' and c.op.startswith(('v_readlane', 'v_readfirstlane')) and isv(pw) & cr: g = max(g, 1)
        if c.kind == 'valu' and c.op.startswith('v_permlane') and isv(pw) & cr: g = max(g, 2)
        if c.kind == 'valu' and 'dpp' in c.text and isv(pw) & cr: g = max(g, 2)
        if p.op.startswith(TRANS) and c.kind in ('valu', 'ds', 'vmem') and isv(pw) & cr: g = max(g, 1)
        if p.op.startswith('v_dot') and c.kind != 'salu' and (isv(pw) & (cr | cw)):
            same = c.op == p.op and not (isv(pw) & set(c.r[:-len(c.w)] if c.w else c.r))
            if not same: g = max(g, 3)
        if ('sdwa' in p.text) and c.kind == 'valu' and isv(pw) & (cr | cw): g = max(g, 1)
        if c.kind == 'salu' and iss(pw) & cr: g = max(g, 1)
        if 'exec' in pw and c.kind in ('mfma', 'valu'): g = max(g, 5)
    if p.kind == 'mfma':
        big = {8: 12, 4: 8}[p.passes]
        if c.kind == 'mfma':
            if pw & set(c.srcAB): g = max(g, big)
            if pw & set(c.srcC):
                if not (c.srcC == p.w and c.passes == p.passes): g = max(g, {8: 10, 4: 6}[p.passes])
            elif pw & cw: g = max(g, big)
        elif c.kind in ('valu', 'ds', 'vmem'):
            if pw & (cr | cw): g = max(g, big)
            if c.kind == 'valu' and set(p.srcC) & cw: g = max(g, {8: 7, 4: 3}[p.passes])
    if p.kind == 'salu':
        if 'm0' in pw and c.kind == 'vmem' and c.isdma: g = max(g, 1)
    if p.kind == 'vmem' and p.wide_store and set(p.data) & cw: g = max(g, 2)
    return g

class Asm:
    def __init__(self):
        self.out = []
        self.hist = []
        self.slot = 0
        self.vm_n = 0; self.vm_done = 0
        self.lg_n = 0; self.lg_done = 0
        self.pend = {}
        self.smem_out = False
        self.nlab = 0
        self.nnops = 0
    def raw(self, s): self.out.append(s)
    def comment(self, s): self.out.append('    ; ' + s)
    def _push(self, ins, slots=1):
        ins.slot = self.slot
        self.slot += slots
        self.out.append('    ' + ins.text)
        self.hist.append(ins)
        if len(self.hist) > 40: self.hist.pop(0)
    def _wait(self, vm=None, lg=None):
        parts = []
        if vm is not None and vm > self.vm_done:
            n = min(self.vm_n - vm, 62); parts.append(f'vmcnt({n})'); self.vm_done = self.vm_n - n
        if lg is not None and lg > self.lg_done:
            if self.smem_out: n = 0; self.smem_out = False
            else: n = min(self.lg_n - lg, 14)
            parts.append(f'lgkmcnt({n})'); self.lg_done = self.lg_n - n
        if parts:
            self._push(Ins('s_waitcnt ' + ' '.join(parts)))
            self.pend = {r: v for r, v in self.pend.items() if not (v[1] <= (self.vm_done if v[0] == 'vm' else self.lg_done))}
    def wait(self, *toks):
        vm = max([t[1] for t in toks if t and t[0] == 'vm'], default=None)
        lg = max([t[1] for t in toks if t and t[0] == 'lg'], default=None)
        self._wait(vm, lg)
    def wait_all(self, vm=True, lg=True):
        self._wait(self.vm_n if vm else None, self.lg_n if lg else None)
    def last_vm(self): return ('vm', self.vm_n)
    def last_lg(self): return ('lg', self.lg_n)
    def pre(self, text):
        self.I(text, dry=True)
    def I(self, text, dry=False):
        ins = Ins(text)
        vm = lg = None
        for r in set(ins.r) | set(ins.w):
            if r in self.pend:
                k, s = self.pend[r]
                if k == 'vm': vm = max(vm or 0, s)
                else: lg = max(lg or 0, s)
        self._wait(vm, lg)
        need = 0
        for p in self.hist:
            g = need_gap(p, ins)
            if g:
                have = self.slot - p.slot - 1
                need = max(need, g - have)
        while need > 0:
            n = min(need, 16)
            self._push(Ins(f's_nop {n-1}'), n); need -= n; self.nnops += 1
        if dry: return None
        m = re.fullmatch(r's_nop (\d+)', text.strip())
        self._push(ins, int(m.group(1)) + 1 if m else 1)
        tok = None
        if ins.kind == 'vmem':
            self.vm_n += 1; tok = ('vm', self.vm_n)
        elif ins.kind == 'ds':
            self.lg_n += 1; tok = ('lg', self.lg_n)
        elif ins.kind == 'smem':
            self.lg_n += 1; tok = ('lg', self.lg_n); self.smem_out = True
        if tok:
            for r in ins.w: self.pend[r] = tok
        return tok
    def __call__(self, text):
        tok = None
        for line in text.strip().split('\n'):
            line = line.strip()
            if not line or line.startswith(';'): continue
            if line.endswith(':'): self.label(line[:-1]); continue
            t = self.I(line)
            if t: tok = t
        return tok
    def label(self, name):
        self.out.append(name + ':')
    def newlabel(self, base='L'):
        self.nlab += 1
        return f'{base}_{self.nlab}'
    def fence(self):
        need = 0
        for p in self.hist:
            g = {'mfma': 12, 'valu': 5, 'vmem': 2, 'salu': 1}.get(p.kind, 0)
            need = max(need, g - (self.slot - p.slot - 1))
        if need > 0: self._push(Ins(f's_nop {need-1}'), need)
    def barrier(self, *toks):
        self.wait(*toks)
        self._push(Ins('s_barrier'))
    def text(self): return '\n'.join(self.out) + '\n'

def interleave(mains, fillers, lead=0):
    out = []
    n = len(mains); m = len(fillers); k = 0
    for i, f in enumerate(mains):
        out.append(f)
        tgt = 0 if i < lead else ((i - lead + 1) * m + (n - lead) - 1) // (n - lead)
        while k < min(tgt, m): out.append(fillers[k]); k += 1
    out += fillers[k:]
    return out

class Stream:
    def __init__(self, items, start, end, paced=False, prio=0):
        self.items = list(items); self.n = len(self.items); self.k = 0
        self.start = start; self.end = end; self.paced = paced; self.prio = prio
    def due(self, i):
        if i < self.start: return 0
        if i >= self.end: return self.n
        return (i - self.start + 1) * self.n / (self.end - self.start + 1)

def sched(A, mains, pres, streams, cap=5):
    n = len(mains)
    for i in range(n):
        pres[i][0]()
        mains[i]()
        budget = cap - (pres[i + 1][1] if i + 1 < n else 0)
        s0 = A.slot
        while True:
            used = A.slot - s0
            late = [s for s in streams if s.k < s.n and i >= s.end]
            if late: s = late[0]
            else:
                if used >= budget: break
                c = [s for s in streams if s.k < s.n and i >= s.start and (not s.paced or s.k < s.due(i))]
                if not c: break
                s = max(c, key=lambda s: (s.prio, (s.due(i) - s.k) / s.n * (s.end - s.start + 1)))
            s.items[s.k](); s.k += 1
    assert all(s.k == s.n for s in streams)
```

```python
import sys, struct
from dsl import *
NAME = "sequential_preLN__linear_attn_block__dense_activation_squared_relu__prompt"
HDR = open("cdna_kernels/" + NAME + ".s.ref").read().split("; Override launch")[0]
def f2u(x): return struct.unpack('<I', struct.pack('<f', x))[0]
def fh(x): return hex(f2u(x))
K = 1024
WS_FF = 0x1000; WS_FS = 0x11000; WS_KVP = 0x40000; WS_O = 0x200000; WS_H = 0x400000
WS_ST = 0x600000; WS_H1 = 0x800000; WS_STAMP = 0x1000000; WS_SIZE = 0x1100000
L_W = 112 * K; L_WO = 0; L_O = 0; L_MISC = 112 * K
L_CSX = L_W + 4 * 8192 + 4096
L_ST1 = L_W + 5 * 8192
L_RED = 56 * K
SX, SWQ, SWO, SW1, SW2, SWS, SOUT, SB1, SB2 = [f"s[{b}:{b+3}]" for b in (8, 12, 16, 20, 24, 28, 32, 36, 40)]
sW, sRB, sJ, sCT, sHF = "s3", "s4", "s5", "s6", "s7"
sNON, sONE = "s60", "s61"
sW1K, sW1A, sW1B, sW2P, sW2G, sW2B, sWOI = "s52", "s53", "s54", "s55", "s56", "s57", "s58"
XF = 16; ACC = [128, 144, 160, 176]; T = 192
W1F = 0; W2A = 112; XR = 240; B2R = 248; B1R = 239
def v(b, n=1): return f"v{b}" if n == 1 else f"v[{b}:{b+n-1}]"
def a(b, n=1): return f"a{b}" if n == 1 else f"a[{b}:{b+n-1}]"
def w2reg(s, nt, off=0, n=4):
    return a(W2A + s * 8 + nt * 4 + off, n) if s < 14 else v(XF + (s - 14) * 8 + nt * 4 + off, n)
MF = "v_mfma_f32_32x32x16_bf16"; MS = "v_mfma_f32_16x16x32_bf16"
SPIN_MAX = 20000
def merge(x, y): return interleave(x, y) if (x and y) else list(x) + list(y)

DEF = dict(rot=(0, 1, 2, 3, 4, 5, 6), parofs=3, sites=(6, 6, 6, 6, 3, 0, 4, 3, 9), g0=10, n_c=0, n_d=6, n_e=4, n_f=8, n_g=6, n_h=8, n_p3=(6, 14, 10), c_p3=(0, 6, 0),
           helper=True, rback=True, codepf=True, flagA=2, pollA=20, early=28, p4gap=4, LA=12, pipe6=False)

def gen(stamps=False, **kw):
    P = dict(DEF); P.update(kw)
    A = Asm()
    L = lambda ls: [lambda s=s: A(s) for s in ls]
    ns = [0]; cnt = [0]
    sreg = lambda i: 70 + 2 * i if i < 16 else 44 + 2 * (i - 16)
    def stamp(tag=None):
        if tag is None:
            cnt[0] += 1
            if cnt[0] - 1 in P.get('skip', ()): return
        elif tag not in P.get('tags', ()): return
        if stamps:
            b = sreg(ns[0]); A(f"{stamps} s[{b}:{b+1}]")
        ns[0] += 1
    def dma(vaddr, srd, m0base, m0off, soff_setup, soff, flags="", off=0):
        if m0base is not None: A(f"s_add_u32 m0, {m0base}, {m0off}")
        if soff_setup: A(soff_setup)
        return A(f"buffer_load_dwordx4 {vaddr}, {srd}, {soff} offen {'offset:%d ' % off if off else ''}{flags} lds")
    def setflag(off_s):
        A(f"""s_add_u32 s62, {off_s}, {WS_FF}
              s_add_u32 s63, {off_s}, {WS_FS}
              s_mov_b64 exec, 1
              buffer_store_dword v14, v15, {SWS}, s62 offen
              buffer_store_dword v14, v15, {SWS}, s63 offen sc1
              s_mov_b64 exec, -1""")
    DUM = T + 45; W1HI = T + 44
    def rback(soff, voff="v9"):
        if P['rback']: A(f"buffer_load_dword {v(DUM)}, {voff}, {SWS}, {soff} offen sc1"); A.pend.pop(v(DUM), None)
    def poll_begin(voff, off_s, dst="v13"):
        A(f"s_add_u32 s62, {off_s}, {WS_FF}")
        A(f"buffer_load_dword {dst}, {voff}, {SWS}, s62 offen sc1")
    def poll_end(voff, off_s, dst="v13"):
        l = A.newlabel("Lpoll"); d = A.newlabel("Lpd")
        A(f"v_cmp_ne_u32 vcc, {dst}, v14")
        A(f"s_cbranch_vccz {d}")
        sv = (A.vm_n, A.vm_done, dict(A.pend), list(A.hist), A.slot)
        A(f"""s_add_u32 s62, {off_s}, {WS_FF}
              s_add_u32 s63, {off_s}, {WS_FS}
              s_mov_b32 s64, 0""")
        A.label(l)
        A(f"buffer_load_dword {dst}, {voff}, {SWS}, s62 offen sc1")
        A(f"v_cmp_ne_u32 vcc, {dst}, v14")
        A(f"s_cbranch_vccz {d}")
        A(f"""s_add_u32 s64, s64, 1
              s_cmp_lt_u32 s64, 8
              s_cbranch_scc1 {l}""")
        A(f"buffer_load_dword {dst}, {voff}, {SWS}, s63 offen sc1")
        A(f"v_cmp_ne_u32 vcc, {dst}, v14")
        A(f"s_cbranch_vccz {d}")
        A(f"""s_cmp_lt_u32 s64, {SPIN_MAX}
              s_cbranch_scc1 {l}""")
        A.label(d)
        A.vm_n, A.vm_done, A.pend, A.hist, A.slot = sv

    class PF:
        total = 28 + 56
        def __init__(s):
            s.n_i = 0; s.n_c = 0; s.tok = {}; s.where = {}; s.free = []; s.synced = 0; s.held = []
            s.low = False
        def give(s, lo, hi): s.free += [(o * K, None) for o in range(lo, hi, 4)]
        def release(s): s.free += s.held; s.held = []
        def drop_below(s, kb): s.free = [f for f in s.free if f[0] >= kb * K]; s.held = [f for f in s.held if f[0] >= kb * K]
        def ok(s, i, o): return o >= 64 * K if i < 28 else (o >= 96 * K or (s.low and o < 64 * K))
        def issue(s, n=1):
            for _ in range(n):
                i = s.n_i
                if i >= s.total: return
                c = [f for f in s.free if s.ok(i, f[0])]
                assert c, f"no free staging slot for piece {i}"
                f = c[0]; s.free.remove(f)
                A.wait(f[1]); o = f[0]; s.where[i] = o
                if i < 28:
                    base = sW1A if i < 14 else sW1B
                    s.tok[i] = dma("v3", SW1, sW1K, o, f"s_add_u32 s59, {base}, {(i % 14) * 16 * 3584}", "s59")
                else:
                    k = i - 28
                    if k % 8 == 0:
                        A(f"""s_mul_i32 {sW2P}, {sW2G}, {64*896}
                              s_add_u32 {sW2P}, {sW2P}, {sW2B}
                              s_add_u32 {sW2G}, {sW2G}, 1
                              s_cmp_eq_u32 {sW2G}, 7
                              s_cselect_b32 {sW2G}, 0, {sW2G}""")
                    s.tok[i] = dma("v2", SW2, sW1K, o, f"s_add_u32 s59, {sW2P}, {(k % 8) * 8 * 896}", "s59")
                s.n_i += 1
        def sync_tok(s):
            n = min(s.n_i, 28); s.synced = n
            return s.tok.get(n - 1)
        def can(s): return s.n_c < s.n_i and (s.n_c >= 28 or s.n_c < s.synced)
        def consume(s, n=1):
            for _ in range(n):
                if not s.can(): return
                i = s.n_c; o = s.where[i]
                if i < 28:
                    r, o2 = ("v4", o - 64 * K) if o < 120 * K else (v(W1HI), o - 96 * K)
                    A(f"ds_read_b64_tr_b16 {a(W1F+4*i,2)}, {r} offset:{o2}")
                    t = A(f"ds_read_b64_tr_b16 {a(W1F+4*i+2,2)}, {r} offset:{o2+2048}")
                    s.held.append((o, None))
                else:
                    A.wait(s.tok[i])
                    k = i - 28
                    r0, r1, o2 = ("v5", "v6", o - 96 * K) if o >= 96 * K else ("v3", "v4", o)
                    A(f"ds_read_b64_tr_b16 {w2reg(k//2,0,2*(k%2),2)}, {r0} offset:{o2}")
                    t = A(f"ds_read_b64_tr_b16 {w2reg(k//2,1,2*(k%2),2)}, {r1} offset:{o2}")
                    s.free.append((o, t))
                s.n_c += 1
        def step(s):
            if s.n_i - s.n_c >= 8 or not [f for f in s.free if s.ok(s.n_i, f[0])]: s.consume()
            s.issue()
        def drain(s):
            while s.can(): s.consume()
    pf = PF()

    stamp()
    rot = P['rot']; ng = len(rot)
    A(f"""s_cmp_ge_u32 s2, 256
          s_cbranch_scc1 Lend
          s_load_dwordx16 s[44:59], s[0:1], 0
          s_load_dwordx2 s[32:33], s[0:1], 64
          s_load_dwordx2 s[28:29], s[0:1], 80
          v_lshrrev_b32 v2, 6, v0
          v_and_b32 v1, 63, v0
          s_and_b32 s62, s2, 7
          s_lshr_b32 s63, s2, 3
          v_readfirstlane_b32 {sW}, v2
          s_lshr_b32 s64, s63, 4
          s_lshl_b32 {sRB}, s62, 1
          s_add_u32 {sRB}, {sRB}, s64
          s_and_b32 {sJ}, s63, 15
          s_cmp_ge_u32 {sJ}, 7
          s_cselect_b32 {sHF}, 1, 0
          s_mul_i32 {sCT}, {sHF}, 7
          s_sub_u32 {sCT}, {sJ}, {sCT}
          s_min_u32 {sCT}, {sCT}, 6
          s_mov_b32 {sONE}, 0x3f803f80""")
    tab = [rot[((i & 15) + P.get('parofs', (ng + 1) // 2) * (i >> 4)) % ng] for i in range(32)]
    t64 = lambda l: sum(x << (4 * i) for i, x in enumerate(l))
    lo, hi = t64(tab[:16]), t64(tab[16:])
    A(f"""s_cmp_eq_u32 s64, 0
          s_cselect_b32 s66, {hex(lo & 0xffffffff)}, 0
          s_cselect_b32 s67, {hex(lo >> 32)}, 0
          s_cselect_b32 s68, 0, {hex(hi & 0xffffffff)}
          s_cselect_b32 s69, 0, {hex(hi >> 32)}
          s_or_b64 s[66:67], s[66:67], s[68:69]
          s_lshl_b32 s64, {sJ}, 2
          s_lshr_b64 s[66:67], s[66:67], s64
          s_and_b32 s67, s66, 15
          s_add_u32 s67, s67, s62
          s_cmp_ge_u32 s67, 7
          s_cselect_b32 s64, 7, 0
          s_sub_u32 s67, s67, s64""")
    A(f"""v_lshrrev_b32 v5, 3, v1
          v_and_b32 v6, 7, v1
          v_lshrrev_b32 v7, 1, v5
          v_xor_b32 v6, v6, v7
          v_mul_u32_u24 v5, 896, v5
          v_lshl_add_u32 v2, v6, 4, v5
          v_xor_b32 v6, 4, v6
          v_lshl_add_u32 v3, v6, 4, v5
          v_lshrrev_b32 v5, 2, v1
          v_and_b32 v6, 3, v1
          v_mul_u32_u24 v5, 2688, v5
          v_lshl_add_u32 v4, v6, 4, v5
          v_mov_b32 v15, 0""")
    A(f"""s_lshl_b32 s65, {sRB}, 2
          s_add_u32 s65, s65, {sW}
          s_mul_i32 s65, s65, {32*896}
          s_mul_i32 s66, {sJ}, 56
          s_and_b32 s66, s66, 0xfffffff0
          s_mul_i32 s62, {sW}, {16*2688}
          s_add_u32 s66, s66, s62
          s_lshl_b32 s68, {sW}, 12
          s_lshl_b32 s69, {sW}, 10
          s_add_u32 s69, s69, {L_W}
          s_add_u32 s30, {sCT}, 7
          s_sub_u32 s30, s30, s67
          s_mov_b32 s10, {2048*896}
          s_mov_b32 s11, 0x20000
          s_mov_b32 s14, {448*2688}
          s_mov_b32 s15, 0x20000""")
    A.wait_all()
    A("s_mov_b32 s12, s46\ns_and_b32 s13, s47, 0xffff\ns_mov_b32 s8, s44\ns_and_b32 s9, s45, 0xffff")
    def srd(d, p, n):
        b = int(d[2:d.index(':')])
        if b != p: A(f"s_mov_b32 s{b}, s{p}")
        A(f"s_and_b32 s{b+1}, s{p+1}, 0xffff\ns_mov_b32 s{b+2}, {n}\ns_mov_b32 s{b+3}, 0x20000")
    ctok = {}
    def chunk_issue(i):
        fs = []
        def f0():
            A(f"s_mul_i32 s63, s67, {64*2688}\ns_add_u32 s63, s63, s66")
            dma("v4", SWQ, "s69", (i % 6) * 8192, "s_add_u32 s62, s63, 896", "s62")
        def f1():
            dma("v4", SWQ, "s69", (i % 6) * 8192 + 4096, "s_add_u32 s62, s63, 1792", "s62")
            A(f"s_lshl_b32 s63, s67, 7")
        fs += [f0, f1]
        for b in range(4):
            def fx(b=b):
                t = dma("v3" if b & 1 else "v2", SX, "s68", i * 16384 + b * 1024,
                        f"s_add_u32 s63, s63, {8*896}" if b else "s_add_u32 s63, s63, s65", "s63")
                if b == 3:
                    A("s_add_u32 s67, s67, 1\ns_cmp_eq_u32 s67, 7\ns_cselect_b32 s67, 0, s67")
                    ctok[i] = t
            fs.append(fx)
        return fs
    for f in chunk_issue(0): f()
    A(f"s_load_dword {sNON}, s[28:29], 0")
    if P['codepf']:
        A.raw("    s_getpc_b64 s[34:35]")
        A.raw("Lpc0:")
        A(f"""s_sub_u32 s34, s34, Lpc0-{NAME}_kernel
              s_subb_u32 s35, s35, 0
              s_lshr_b32 s64, s2, 3
              s_lshl_b32 s64, s64, 2
              s_add_u32 s64, s64, {sW}
              s_lshl_b32 s64, s64, 8
              s_min_u32 s64, s64, Lend-{NAME}_kernel-192
              s_add_u32 s34, s34, s64
              s_addc_u32 s35, s35, 0""")
        for k in range(4): A(f"s_load_dword s{50+(k&1)}, s[34:35], {64*k}"); A.pend.pop(f"s{50+(k&1)}", None)
    c1 = chunk_issue(1)
    for f in c1[:2]: f()
    srd(SWO, 48, 448 * 896); srd(SW1, 52, 448 * 3584); srd(SB1, 54, 3584); srd(SW2, 56, 1792 * 896); srd(SB2, 58, 896); srd(SOUT, 32, 2048 * 896)
    A("s_cmp_ge_u32 s30, 7\ns_cselect_b32 s64, 7, 0\ns_sub_u32 s48, s30, s64")
    srd(SWS, 28, WS_SIZE)
    WA = ACC[3]; SEL = ACC[3] + 4; S16K = ACC[3] + 8; S16V = ACC[3] + 12
    A(f"""v_and_b32 v10, 31, v1
          v_lshrrev_b32 v11, 5, v1
          v_lshrrev_b32 v12, 1, v10
          v_and_b32 v12, 7, v12
          v_xor_b32 v12, v12, v11
          v_lshlrev_b32 v12, 4, v12
          v_lshl_add_u32 v5, v10, 7, v12
          v_add_u32 v5, s68, v5
          s_lshl_b32 s64, {sW}, 5
          v_xor_b32 v5, s64, v5
          v_xor_b32 v6, 32, v5
          v_xor_b32 v7, 64, v5
          v_xor_b32 v8, 0x60, v5
          v_bfe_u32 v12, v1, 4, 1
          v_and_b32 v9, 3, v1
          v_lshl_add_u32 v9, v12, 2, v9
          s_and_b32 s64, {sJ}, 1
          v_add_u32 v9, s64, v9
          v_and_b32 v9, 7, v9
          v_lshlrev_b32 v9, 3, v9
          v_bfe_u32 v12, v1, 2, 2
          v_lshl_add_u32 v12, v11, 3, v12
          v_lshl_add_u32 v9, v12, 6, v9
          v_add_u32 {v(WA)}, s69, v9
          v_xor_b32 {v(WA+1)}, 0x400, {v(WA)}
          v_xor_b32 {v(WA+2)}, 0x800, {v(WA)}
          v_xor_b32 {v(WA+3)}, 0xc00, {v(WA)}""")
    A(f"""s_lshr_b32 s64, {sW}, 1
          s_lshl_b32 s64, s64, 1
          s_add_u32 s64, s64, {sHF}
          s_lshl_b32 s64, s64, 12
          s_lshl_b32 s59, s48, 14
          s_add_u32 s64, s64, s59
          s_and_b32 s59, {sW}, 1
          s_lshl_b32 s59, s59, 2
          v_lshrrev_b32 v12, 1, v10
          v_and_b32 v12, 7, v12
          v_xor_b32 v12, s59, v12
          v_lshlrev_b32 v12, 4, v12
          v_lshl_add_u32 v12, v10, 7, v12
          v_lshl_add_u32 v12, v11, 3, v12
          v_add_u32 v12, s64, v12""")
    SUM, SUM2, SQ, SQ2, MEAN, RSTD, CSK, CSV = [T + 32 + i for i in range(8)]
    TM = T + 40
    for r in (SUM, SUM2, SQ, SQ2): A(f"v_mov_b32 {v(r)}, 0")
    A(f"""v_lshrrev_b32 v13, 4, v1
          v_xor_b32 v13, v13, v1
          v_and_b32 v13, 1, v13
          v_cmp_eq_u32 vcc, 0, v13
          v_mov_b32 v13, {sONE}
          v_xor_b32 {v(T+44)}, 16, v12
          v_xor_b32 {v(T+46)}, 32, v12
          v_xor_b32 {v(T+47)}, 48, v12
          v_cndmask_b32 {v(SEL)}, 0, v13, vcc""")
    for d in range(1, 4): A(f"v_mov_b32 {v(SEL+d)}, {v(SEL)}")
    A(f"""s_lshl_b32 {sW1K}, {sW}, 10
          s_lshl_b32 {sW1A}, {sJ}, 8
          s_mul_i32 s64, {sW}, {4*3584}
          s_add_u32 {sW1A}, {sW1A}, s64
          s_and_b32 s64, {sRB}, 1
          s_mul_i32 s59, s64, {14*16*3584}
          s_sub_u32 {sW1B}, {sW1A}, s59
          s_add_u32 {sW1B}, {sW1B}, {14*16*3584}
          s_add_u32 {sW1A}, {sW1A}, s59
          s_lshl_b32 s64, s64, 1
          s_add_u32 s64, s64, {sHF}
          s_lshl_b32 {sWOI}, s64, 2
          s_lshl_b32 {sW2G}, s64, 1
          s_add_u32 {sW2G}, {sW2G}, {sCT}
          s_cmp_ge_u32 {sW2G}, 7
          s_cselect_b32 s64, 7, 0
          s_sub_u32 {sW2G}, {sW2G}, s64
          s_mul_i32 {sW2B}, {sW}, {448*896}
          s_lshl_b32 s64, {sCT}, 7
          s_add_u32 {sW2B}, {sW2B}, s64
          s_mov_b32 s44, {fh(1e-6)}
          s_mov_b32 s45, {fh(1e-6)}
          s_mov_b32 s46, {fh(1.4426950408889634)}
          s_mov_b32 s47, {fh(1.4426950408889634)}""")
    for f in c1[2:]: f()
    stamp()
    wq_tok = [None]; wq_n = [0]
    def wq_issue(i):
        wq_n[0] += 1
        A(f"s_mul_i32 s62, s67, {64*2688}")
        wq_tok[0] = dma("v4", SWQ, "s69", 8192 + i * 4096, "s_add_u32 s62, s62, s66", "s62")
        A("s_add_u32 s67, s67, 1\ns_cmp_eq_u32 s67, 7\ns_cselect_b32 s67, 0, s67")
    wo_tok = [None]; wo_n = [0]
    def wo_issue():
        i = wo_n[0]; wo_n[0] += 1
        if i > 14: return
        if i == 14:
            A(f"s_mov_b32 m0, {L_WO + 56*1024}\ns_mov_b32 s62, {448*896}")
            wo_tok[0] = A(f"buffer_load_dwordx4 v2, {SWO}, s62 offen lds")
            return
        A(f"""s_lshl_b32 s62, {sWOI}, 2
              s_add_u32 s62, s62, {sW}
              s_lshl_b32 m0, s62, 10
              s_mul_i32 s62, s62, {8*896}
              s_lshl_b32 s63, {sCT}, 7
              s_add_u32 s62, s62, s63
              buffer_load_dwordx4 v2, {SWO}, s62 offen lds
              s_add_u32 {sWOI}, {sWOI}, 1
              s_cmp_eq_u32 {sWOI}, 14
              s_cselect_b32 {sWOI}, 0, {sWOI}""")
    def dots(i, extra=()):
        for t in range(4):
            xf = XF + (i * 4 + t) * 4
            if t < len(extra): extra[t]()
            for d in range(4):
                A(f"v_dot2c_f32_bf16 {v(SUM + (d & 1))}, {sONE}, {v(xf+d)}")
                A(f"v_dot2c_f32_bf16 {v(SQ + (d & 1))}, {v(xf+d)}, {v(xf+d)}")
    MR, RR = ACC[2], T + 48
    def wfrag(i, t): return T + t * 8 if i % 2 == 0 else (ACC[2] + t * 8 if t < 2 else T + 48 + (t - 2) * 8)
    def rdx(i, t):
        if i == 4 and t == 0:
            for r in range(5, 9): A(f"v_add_u32 v{r}, 0x10000, v{r}")
        A(f"ds_read_b128 {v(XF+(i*4+t)*4,4)}, v{5+t} offset:{(i % 4) * 16384}")
    def rdw(i, t, kv):
        wf = wfrag(i, t) + 4 * kv; o = (i % 6) * 8192 + kv * 4096
        A(f"ds_read_b64_tr_b16 {v(wf,2)}, {v(WA+t)} offset:{o}")
        A(f"ds_read_b64_tr_b16 {v(wf+2,2)}, {v(WA+t)} offset:{o+256}")
    def reads(i):
        fs = []
        for t in range(4):
            fs.append(lambda t=t: (rdx(i, t), rdw(i, t, 0)))
            fs.append(lambda t=t: rdw(i, t, 1))
        return fs
    CSALL = 5 if P['pipe6'] else 6
    def mfmas(i):
        mains = []
        for t in range(4):
            wf = wfrag(i, t); xf = XF + (i * 4 + t) * 4
            first = (i == 0 and t == 0)
            mains.append(lambda xf=xf, wf=wf, first=first: A(f"{MF} {v(ACC[0],16)}, {v(xf,4)}, {v(wf,4)}, {'0' if first else v(ACC[0],16)}"))
            mains.append(lambda xf=xf, wf=wf, first=first: A(f"{MF} {v(ACC[1],16)}, {v(xf,4)}, {v(wf+4,4)}, {'0' if first else v(ACC[1],16)}"))
            if t == 0 or i >= CSALL:
                z = first or (i == CSALL and t == 0)
                def cs(wf=wf, z=z):
                    A(f"{MS} {v(S16K,4)}, {v(SEL,4)}, {v(wf,4)}, {'0' if z else v(S16K,4)}")
                    A(f"{MS} {v(S16V,4)}, {v(SEL,4)}, {v(wf+4,4)}, {'0' if z else v(S16V,4)}")
                mains.append(cs)
        return mains
    def cbar(i):
        A.barrier(ctok[i], A.last_lg())
        stamp('p1')
        l = A.newlabel("Lres")
        A(f"s_cmp_lg_u32 s48, {i}\ns_cbranch_scc1 {l}")
        for q, r in enumerate(("v12", v(T + 44), v(T + 46), v(T + 47))): A.raw(f"    ds_read_b64 {a(XR+2*q,2)}, {r}")
        A.label(l)
    def pub():
        A(f"""v_and_b32 v13, 16, v1
              v_cmp_ne_u32 vcc, 0, v13
              s_lshl_b32 s64, {sW}, 2
              s_add_u32 s64, s64, {L_CSX}
              v_lshl_add_u32 v13, v10, 4, s64
              v_cndmask_b32 {v(TM)}, {v(S16K)}, {v(S16K+1)}, vcc
              v_cndmask_b32 {v(TM+1)}, {v(S16V)}, {v(S16V+1)}, vcc
              ds_write_b32 v13, {v(TM)}
              ds_write_b32 v13, {v(TM+1)} offset:512
              v_lshlrev_b32 v13, 4, v10
              v_add_u32 v13, {L_CSX}, v13""")
    def v2setup():
        A(f"""v_lshrrev_b32 v2, 3, v1
              v_and_b32 v3, 7, v1
              v_bfe_u32 v14, v1, 4, 1
              v_lshlrev_b32 v14, 2, v14
              v_xor_b32 v3, v3, v14
              v_mul_u32_u24 v2, 896, v2
              v_lshl_add_u32 v2, v3, 4, v2
              v_lshrrev_b32 v14, 4, v1
              v_and_b32 v3, 15, v1
              v_lshlrev_b32 v9, 2, v14
              v_xor_b32 v3, v3, v9
              v_mul_u32_u24 v14, 3584, v14
              v_lshl_add_u32 v3, v3, 4, v14""")
    stream = []
    for i in range(3, 7): stream += [(f, 1) for f in chunk_issue(i)]
    stream += [(lambda k=k: wq_issue(k), 2 + k // 2) for k in range(7)]
    stream += [(lambda: (v2setup(), wo_issue()), 4)] + [(wo_issue, 4)] * 14 + [(pf.issue, 6)] * 12
    passed = [0]
    def site(k):
        out = []
        for _ in range(P['sites'][k]):
            c = [e for e in stream if e[1] <= passed[0]]
            assert c, k
            i = next(i for i, e in enumerate(stream) if e[1] <= passed[0])
            out.append(stream.pop(i)[0])
        return out
    cbar(0)
    for f in reads(0): f()
    for f in chunk_issue(2): f()
    for i in range(5):
        cbar(i + 1); passed[0] = i + 1
        dm = site(i); h = max(0, len(dm) - 3)
        for f in interleave(mfmas(i), merge(reads(i + 1), dm[:h])): f()
        dots(i, dm[h:] + ([pub] if (i == 4 and P['pipe6']) else []))
    CX = TM
    if P['pipe6']:
        cbar(6); passed[0] = 6; pf.give(64, 96)
        for f in interleave(mfmas(5), merge(reads(6), site(5))): f()
        A(f"ds_read_b128 {v(MR,4)}, v13\nds_read_b128 {v(MR+4,4)}, v13 offset:512")
        dots(5); dots(6)
    else:
        m5 = mfmas(5)
        for f in interleave(m5[:6], site(5)) + [pub] + m5[6:]: f()
        dots(5)
        stamp('p1')
        cbar(6); passed[0] = 6; pf.give(64, 96)
        for t in range(4): rdx(6, t)
        for t in range(2): rdw(6, t, 0); rdw(6, t, 1)
        A(f"ds_read_b128 {v(MR,4)}, v13\nds_read_b128 {v(MR+4,4)}, v13 offset:512")
        dots(6, [lambda: None, lambda: (rdw(6, 2, 0), rdw(6, 2, 1)), lambda: (rdw(6, 3, 0), rdw(6, 3, 1))])
    st = [f"v_add_f32 {v(SUM)}, {v(SUM)}, {v(SUM2)}", f"v_add_f32 {v(SQ)}, {v(SQ)}, {v(SQ2)}",
          f"v_mov_b32 {v(SUM2)}, {v(SUM)}", f"v_mov_b32 {v(SQ2)}, {v(SQ)}",
          f"v_add_f32 {v(CSK)}, {v(MR)}, {v(MR+1)}", f"v_add_f32 {v(CSV)}, {v(MR+4)}, {v(MR+5)}",
          f"v_permlane32_swap_b32 {v(SUM)}, {v(SUM2)}", f"v_permlane32_swap_b32 {v(SQ)}, {v(SQ2)}",
          f"v_add_f32 {v(CSK)}, {v(CSK)}, {v(MR+2)}", f"v_add_f32 {v(CSV)}, {v(CSV)}, {v(MR+6)}",
          f"v_add_f32 {v(SUM)}, {v(SUM)}, {v(SUM2)}", f"v_add_f32 {v(SQ)}, {v(SQ)}, {v(SQ2)}",
          f"v_add_f32 {v(CSK)}, {v(CSK)}, {v(MR+3)}", f"v_add_f32 {v(CSV)}, {v(CSV)}, {v(MR+7)}",
          f"v_mul_f32 {v(MEAN)}, {fh(1.0/448)}, {v(SUM)}", f"v_mul_f32 {v(RSTD)}, {fh(1.0/448)}, {v(SQ)}",
          f"s_lshl_b32 s64, {sW}, 8\ns_add_u32 s64, s64, {L_ST1}\nv_lshl_add_u32 v13, v10, 2, s64",
          f"v_fma_f32 {v(RSTD)}, -{v(MEAN)}, {v(MEAN)}, {v(RSTD)}", f"ds_write_b32 v13, {v(MEAN)}",
          f"v_max_f32 {v(RSTD)}, 0, {v(RSTD)}", f"v_add_f32 {v(RSTD)}, {fh(1e-5)}, {v(RSTD)}", f"v_rsq_f32 {v(RSTD)}, {v(RSTD)}",
          f"ds_write_b32 v13, {v(RSTD)} offset:128\nv_lshl_add_u32 v13, v11, 4, s64"]
    def rdstats():
        A.wait(A.last_lg())
        for q in range(4):
            A(f"ds_read_b128 {v(MR+4*q,4)}, v13 offset:{q*32}")
            A(f"ds_read_b128 {v(RR+4*q,4)}, v13 offset:{128+q*32}")
    m6 = mfmas(6); d6 = site(6)
    for f in interleave(m6[:7], L(st)) + d6[:1] + [m6[7], rdstats] + interleave(m6[8:], d6[1:]): f()
    dt = site(7)
    stamp()
    A(f"""v_lshlrev_b32 v12, 4, v1
          s_add_u32 {sNON}, {sNON}, 1
          s_add_u32 s62, s68, {6*16384}
          v_add_u32 v13, s62, v12
          s_add_u32 s62, {sW1K}, {6*16384}
          v_add_u32 v7, s62, v12
          v_cndmask_b32 {v(TM)}, {v(S16K)}, {v(S16K+1)}, vcc
          v_cndmask_b32 {v(TM+1)}, {v(S16V)}, {v(S16V+1)}, vcc
          v_pk_add_f32 {v(CSK,2)}, {v(CSK,2)}, {v(TM,2)}""")
    PK, PV = T, T + 8
    def phi_pair(r, dst, t0):
        A(f"""v_pk_mul_f32 {v(t0,2)}, {v(r,2)}, s[46:47]
              v_max_f32 {v(r)}, s44, {v(r)}
              v_max_f32 {v(r+1)}, s44, {v(r+1)}
              v_exp_f32 {v(t0)}, {v(t0)} clamp
              v_exp_f32 {v(t0+1)}, {v(t0+1)} clamp""")
        return lambda: A(f"""v_pk_add_f32 {v(r,2)}, {v(r,2)}, {v(t0,2)}
              v_cvt_pk_bf16_f32 {v(dst)}, {v(r)}, {v(r+1)}""")
    prev = None
    for r in range(0, 16, 2):
        A(f"v_pk_fma_f32 {v(ACC[0]+r,2)}, {v(MR+r,2)}, {v(CSK,2)}, {v(ACC[0]+r,2)} op_sel:[0,0,0] op_sel_hi:[1,0,1] neg_lo:[1,0,0] neg_hi:[1,0,0]")
        A(f"v_pk_fma_f32 {v(ACC[1]+r,2)}, {v(MR+r,2)}, {v(CSK,2)}, {v(ACC[1]+r,2)} op_sel:[0,1,0] op_sel_hi:[1,1,1] neg_lo:[1,0,0] neg_hi:[1,0,0]")
        A(f"v_pk_fma_f32 {v(ACC[0]+r,2)}, {v(ACC[0]+r,2)}, {v(RR+r,2)}, s[44:45]")
        A(f"v_pk_mul_f32 {v(ACC[1]+r,2)}, {v(ACC[1]+r,2)}, {v(RR+r,2)}")
        if prev: prev()
        prev = phi_pair(ACC[0] + r, PK + r // 2, TM + (r & 2))
        A(f"v_cvt_pk_bf16_f32 {v(PV+r//2)}, {v(ACC[1]+r)}, {v(ACC[1]+r+1)}")
    A("s_mov_b32 exec_lo, 0x10000000\ns_mov_b32 exec_hi, 0x10000000")
    for r in range(0, 8, 2): A(f"v_pk_mov_b32 {v(PV+r,2)}, s[60:61], s[60:61] op_sel:[1,1]")
    A("s_mov_b64 exec, -1")
    prev()
    A(f"{MF} {v(ACC[2],16)}, {v(PK,4)}, {v(PV,4)}, 0")
    A(f"{MF} {v(ACC[2],16)}, {v(PK+4,4)}, {v(PV+4,4)}, {v(ACC[2],16)}")
    A(f"""s_lshl_b32 s65, {sJ}, 4
          s_add_u32 s65, s65, {sRB}
          s_lshl_b32 s65, s65, 12
          s_add_u32 s65, s65, {sW1K}
          s_add_u32 s65, s65, {WS_KVP}
          s_mov_b32 s48, 0x07060500
          s_mov_b32 s49, 0x07060501
          s_mov_b32 s50, 0x07060502
          s_mov_b32 s51, 0x07060503""")
    for f in dt[:1]: f()
    A.barrier()
    for q in range(4): A(f"ds_write_b128 v13, {v(ACC[2]+4*q,4)} offset:{q*1024}")
    for f in dt[1:2]: f()
    A.barrier(A.last_lg())
    for ww in range(4): A(f"ds_read_b128 {v(T+4*ww,4)}, v7 offset:{ww*4096}")
    for f in dt[2:]: f()
    A(f"v_mov_b32 v14, {sNON}")
    for d in (0, 2):
        A(f"v_pk_add_f32 {v(T+d,2)}, {v(T+d,2)}, {v(T+4+d,2)}\nv_pk_add_f32 {v(T+8+d,2)}, {v(T+8+d,2)}, {v(T+12+d,2)}")
    for d in (0, 2): A(f"v_pk_add_f32 {v(T+d,2)}, {v(T+d,2)}, {v(T+8+d,2)}")
    for d in range(4): A(f"v_perm_b32 {v(T+d)}, {v(T+d)}, v14, s{48+d}")
    A(f"buffer_store_dwordx4 {v(T,4)}, v12, {SWS}, s65 offen sc1")
    stamp()
    def split(src, hi, lo): return [f"v_and_b32 {v(hi)}, 0xffff0000, {v(src)}", f"v_sub_f32 {v(lo)}, {v(src)}, {v(hi)}"]
    A.barrier(wq_tok[0])
    pf.give(96, 112)
    stamp('p1')
    assert wo_n[0] > 0 and wq_n[0] == 7
    setup2 = f"""v_and_b32 v6, 15, v1
          v_lshlrev_b32 v9, 7, v6
          v_bfe_u32 v7, v1, 2, 2
          v_lshl_add_u32 v8, v11, 2, v7
          v_bfe_u32 v5, v1, 4, 1
          v_lshlrev_b32 v5, 5, v5
          v_and_b32 v6, 3, v1
          v_lshl_add_u32 v5, v6, 3, v5
          v_xor_b32 v6, {sW}, v7
          v_lshl_add_u32 v4, v6, 6, v5
          v_lshl_add_u32 v4, v8, 8, v4
          v_add_u32 {v(W1HI)}, {96*K}, v4
          v_add_u32 v4, {64*K}, v4
          v_lshrrev_b32 v6, 1, v7
          v_lshl_add_u32 v5, v6, 6, v5
          v_lshl_add_u32 v5, v8, 7, v5
          s_and_b32 s64, {sW}, 1
          s_lshl_b32 s64, s64, 6
          v_xor_b32 v8, s64, v5
          s_add_u32 s64, {sW1K}, {96*K}
          v_add_u32 v5, s64, v5
          v_xor_b32 v6, 64, v5""".split("\n")
    XE = ACC[1]; WE = ACC[1] + 4
    xe = split(MEAN, TM, TM + 1) + [f"v_cvt_pk_bf16_f32 {v(XE)}, -{v(TM)}, -{v(TM+1)}", f"v_cvt_pk_bf16_f32 {v(XE+1)}, -{v(TM)}, 0",
          f"v_mov_b32 {v(XE+2)}, 0", f"v_mov_b32 {v(XE+3)}, 0", f"v_mov_b32 {v(WE+2)}, 0", f"v_mov_b32 {v(WE+3)}, 0",
          f"s_lshl_b32 s64, {sW}, 2\ns_add_u32 s64, s64, {L_CSX}\nv_lshl_add_u32 v13, v10, 4, s64",
          f"s_lshl_b32 s65, {sJ}, 16\ns_add_u32 s65, s65, {sW1K}\ns_add_u32 s65, s65, {WS_KVP}\ns_mov_b32 s48, 0x0c0c0400\ns_mov_b32 s49, 0x04000c0c"]
    qorder = [4 * c for c in range(7)] + [4 * c + t for c in range(7) for t in range(1, 4)]
    def rdq(k):
        s = qorder[k]; wf = T + 16 + (k % 4) * 4
        A(f"ds_read_b64_tr_b16 {v(wf,2)}, {v(WA+s%4)} offset:{8192+(s//4)*4096}")
        A(f"ds_read_b64_tr_b16 {v(wf+2,2)}, {v(WA+s%4)} offset:{8192+(s//4)*4096+256}")
    G = lambda p: XF + 4 * qorder[p]
    def gload(p):
        A(f"""s_add_u32 s62, {sRB}, {p}
              s_and_b32 s62, s62, 15
              s_lshl_b32 s62, s62, 12
              s_add_u32 s62, s62, s65""")
        A(f"buffer_load_dwordx4 {v(G(p),4)}, v12, {SWS}, s62 offen sc1")
    for k in range(3): rdq(k)
    g0 = P['g0']; gn = [0]
    mains = []
    for k in range(28):
        def m(k=k):
            s = qorder[k]; wf = T + 16 + (k % 4) * 4
            A(f"{MF} {v(ACC[0],16)}, {v(wf,4)}, {v(XF+4*s,4)}, {'0' if k == 0 else v(ACC[0],16)}")
            if k < 7: A(f"{MS} {v(S16K,4)}, {v(SEL,4)}, {v(wf,4)}, {'0' if k == 0 else v(S16K,4)}")
            if k + 3 < 28: rdq(k + 3)
            if k >= g0 and gn[0] < 16 and ((k - g0) % 2 == 0 or P.get('gfast')): gload(gn[0]); gn[0] += 1
        mains.append(m)
    cst = [None]
    def cs_pub():
        A(f"v_cndmask_b32 {v(TM)}, {v(S16K)}, {v(S16K+1)}, vcc")
        cst[0] = A(f"ds_write_b32 v13, {v(TM)}")
        A(f"v_lshlrev_b32 v13, 4, v10\nv_add_u32 v13, {L_CSX}, v13")
    def cs_get():
        A.barrier(cst[0])
        A(f"ds_read_b128 {v(S16V,4)}, v13")
    we = [f"v_add_f32 {v(S16V)}, {v(S16V)}, {v(S16V+1)}", f"v_add_f32 {v(S16V+2)}, {v(S16V+2)}, {v(S16V+3)}", f"v_cmp_gt_u32 vcc, 32, v1",
          f"v_add_f32 {v(S16V)}, {v(S16V)}, {v(S16V+2)}", f"v_cndmask_b32 {v(S16V)}, 0, {v(S16V)}, vcc"] + split(S16V, TM, TM + 1) + \
         [f"v_cvt_pk_bf16_f32 {v(WE)}, {v(TM)}, {v(TM)}", f"v_cvt_pk_bf16_f32 {v(WE+1)}, {v(TM+1)}, 0"]
    seq = interleave(mains[:9], merge(L(xe), site(8))) + [cs_pub] + interleave(mains[9:14], L(setup2[:11])) + [cs_get] + \
          interleave(mains[14:19], L(setup2[11:])) + interleave(mains[19:], L(we))
    for f in seq: f()
    A(f"{MF} {v(ACC[0],16)}, {v(WE,4)}, {v(XE,4)}, {v(ACC[0],16)}")
    stamp('p1')
    while gn[0] < 16: gload(gn[0]); gn[0] += 1
    PQ = T + 48
    prev = None
    for r in range(0, 16, 2):
        A(f"v_pk_fma_f32 {v(ACC[0]+r,2)}, {v(ACC[0]+r,2)}, {v(MEAN,2)}, s[44:45] op_sel:[0,1,0] op_sel_hi:[1,1,1]")
        if prev: prev()
        prev = phi_pair(ACC[0] + r, PQ + r // 2, TM + (r & 2))
    prev()
    A(f"s_mov_b32 exec_lo, 0\nv_mov_b32 {v(PQ+6)}, 0\nv_mov_b32 {v(PQ+7)}, 0\ns_mov_b64 exec, -1\ns_mov_b32 s64, 0")
    stamp()
    BAD = TM + 2
    A.label("Lh1")
    for p in range(16):
        b = G(p)
        A(f"v_perm_b32 {v(TM)}, {v(b+1)}, {v(b)}, s48")
        A(f"v_perm_b32 {v(TM+1)}, {v(b+3)}, {v(b+2)}, s49")
        if p == 0: A(f"v_bitop3_b32 {v(BAD)}, {v(TM)}, {v(TM+1)}, v14 bitop3:0x56")
        else:
            for d in (0, 2): A(f"v_pk_add_f32 {v(T+d,2)}, {v(G(0)+d,2) if p == 1 else v(T+d,2)}, {v(b+d,2)}")
            A(f"v_bitop3_b32 {v(TM)}, {v(TM)}, {v(TM+1)}, v14 bitop3:0x56\nv_or_b32 {v(BAD)}, {v(BAD)}, {v(TM)}")
    A(f"""v_cmp_ne_u32 vcc, 0, {v(BAD)}
          s_cbranch_vccz Lh1d
          s_add_u32 s64, s64, 1
          s_cmp_ge_u32 s64, {SPIN_MAX//8}
          s_cbranch_scc1 Lh1d""")
    sv = (A.vm_n, A.vm_done, dict(A.pend), list(A.hist), A.slot)
    for p in range(16): gload(p)
    A("s_branch Lh1")
    A.vm_n, A.vm_done, A.pend, A.hist, A.slot = sv
    A.label("Lh1d")
    stamp()
    A(f"v_cvt_pk_bf16_f32 {v(T)}, {v(T)}, {v(T+1)}\nv_cvt_pk_bf16_f32 {v(T+1)}, {v(T+2)}, {v(T+3)}")
    A(f"""s_cmp_eq_u32 {sW}, 3
          s_cselect_b32 exec_hi, -1, 0
          s_mov_b32 exec_lo, 0
          v_mov_b32 {v(T)}, 0
          v_mov_b32 {v(T+1)}, 0
          s_mov_b64 exec, -1
          s_lshr_b32 s62, {sW}, 1
          s_lshl_b32 s62, s62, 10
          s_and_b32 s63, {sW}, 1
          s_lshl_b32 s63, s63, 3
          s_add_u32 s62, s62, s63
          s_add_u32 s62, s62, {L_MISC}
          v_add_u32 v13, s62, v12
          ds_write_b64 v13, {v(T,2)}
          v_add_u32 v13, {L_MISC}, v12""")
    late_wo = wo_n[0] < 15
    while wo_n[0] < 15: wo_issue()
    nc = P['n_c']
    pf.issue(nc // 2)
    A.barrier(A.last_lg(), None if late_wo else wo_tok[0])
    pf.give(116, 160)
    A(f"ds_read_b128 {v(T,4)}, v13\nds_read_b128 {v(T+4,4)}, v13 offset:1024")
    A(f"""s_lshl_b32 s65, {sRB}, 2
          s_add_u32 s65, s65, {sW}
          s_lshl_b32 s66, s65, 4
          s_add_u32 s66, s66, {sJ}
          s_lshl_b32 s65, s66, 11
          s_add_u32 s65, s65, {WS_O}
          s_lshl_b32 s66, s66, 2""")
    A(f"{MF} {v(ACC[0],16)}, {v(T,4)}, {v(PQ,4)}, 0")
    A(f"{MF} {v(ACC[0],16)}, {v(T+4,4)}, {v(PQ+4,4)}, {v(ACC[0],16)}")
    pf.issue(nc - nc // 2)
    A(f"""v_mov_b32 {v(TM)}, {v(ACC[0]+12)}
          v_mov_b32 {v(TM+1)}, {v(ACC[0]+12)}
          v_permlane32_swap_b32 {v(TM+1)}, {v(TM)}
          v_add_f32 {v(TM)}, {fh(1e-6)}, {v(TM)}
          v_rcp_f32 {v(TM)}, {v(TM)}""")
    for r in range(0, 16, 2):
        A(f"v_pk_mul_f32 {v(ACC[0]+r,2)}, {v(ACC[0]+r,2)}, {v(TM,2)} op_sel:[0,0] op_sel_hi:[1,0]")
    for r in range(0, 16, 2):
        A(f"v_cvt_pk_bf16_f32 {v(T+8+r//2)}, {v(ACC[0]+r)}, {v(ACC[0]+r+1)}")
        if r == 6: A(f"buffer_store_dwordx4 {v(T+8,4)}, v12, {SWS}, s65 offen sc1")
    A(f"s_mov_b32 exec_lo, 0\nv_mov_b32 {v(T+14)}, 0\nv_mov_b32 {v(T+15)}, 0\ns_mov_b64 exec, -1")
    t = A(f"buffer_store_dwordx4 {v(T+12,4)}, v12, {SWS}, s65 offen offset:1024 sc1")
    A(f"s_cmp_ge_u32 {sJ}, 14\ns_cbranch_scc1 Lidle")
    assert pf.n_i <= 28
    A(f"s_mov_b32 {sWOI}, {sW2G}")
    pf.issue(P['n_d'])
    order = [h * 2 + u for h in (0, 1, 8, 9, 2, 3, 10, 11, 4, 5, 12, 13, 6, 7, 14, 15) for u in range(2)]
    WOF = lambda k: XF + 4 * k if k < 28 else ACC[1] + 4 * (k - 28)
    def rdwo(k):
        s = order[k]; row = 28 * (s // 2) + 16 * (s % 2)
        A(f"ds_read_b64_tr_b16 {v(WOF(k),2)}, v8 offset:{L_WO+row*128}")
        A(f"ds_read_b64_tr_b16 {v(WOF(k)+2,2)}, v8 offset:{L_WO+row*128+1024}")
    def resid():
        for d in range(8):
            A(f"v_accvgpr_read_b32 {v(TM)}, {a(XR+d)}")
            A(f"v_lshlrev_b32 {v(ACC[0]+2*d)}, 16, {v(TM)}\nv_and_b32 {v(ACC[0]+2*d+1)}, 0xffff0000, {v(TM)}")
    resid()
    if not late_wo:
        for k in range(20): rdwo(k)
    A.wait(t)
    setflag("s66")
    rback("s65")
    stamp()
    A(f"""s_lshl_b32 s62, {sJ}, 8
          s_lshl_b32 s63, {sW}, 6
          s_add_u32 s62, s62, s63
          v_lshlrev_b32 v7, 1, v10
          buffer_load_ushort {a(B1R)}, v7, {SB1}, s62 offen
          s_lshl_b32 s62, {sCT}, 7
          s_and_b32 s63, {sW}, 1
          s_lshl_b32 s63, s63, 6
          s_add_u32 s62, s62, s63
          v_lshlrev_b32 v13, 3, v11""")
    for q in range(4): A(f"buffer_load_dwordx2 {a(B2R+2*q,2)}, v13, {SB2}, s62 offen offset:{q*16}")
    pf.issue(P['n_e'])
    if late_wo:
        A.barrier(wo_tok[0])
        for k in range(20): rdwo(k)
    for k in range(20, 32): rdwo(k)
    A(f"""s_and_b32 s65, {sW}, 1
          s_lshl_b32 s65, s65, 1
          s_add_u32 s65, s65, {sHF}
          s_lshl_b32 s66, {sRB}, 2
          s_add_u32 s65, s65, s66
          s_lshl_b32 s65, s65, 4
          s_lshr_b32 s66, {sW}, 1
          s_lshl_b32 s66, s66, 3
          s_add_u32 s65, s65, s66
          s_lshl_b32 s67, s65, 2
          v_and_b32 v7, 7, v1
          v_lshlrev_b32 v7, 2, v7""")
    poll_begin("v7", "s67")
    A(f"""s_lshl_b32 s65, s65, 11
          s_add_u32 s65, s65, {WS_O}
          s_and_b32 s66, {sW}, 1
          s_lshl_b32 s66, s66, 15
          s_lshr_b32 s68, {sW}, 1
          s_lshl_b32 s68, s68, 14
          s_add_u32 s66, s66, s68""")
    A.barrier(A.last_lg(), pf.sync_tok())
    pf.give(112, 116)
    stamp()
    poll_end("v7", "s67")
    stamp()
    otok = {}
    def o_issue(i):
        if i % 4 == 0: otok[i] = dma("v12", SWS, "s66", L_O + i * 1024, f"s_add_u32 s62, s65, {i*1024}", "s62", "sc1")
        else: otok[i] = dma("v12", SWS, None, 0, None, "s62", "sc1", off=(i % 4) * 1024)
    for i in range(8): o_issue(i)
    A(f"""s_lshr_b32 s63, {sW}, 1
          s_lshl_b32 s63, s63, 15
          v_add_u32 v7, s63, v12""")
    pf.consume(12)
    for i in range(8, 12): o_issue(i)
    def rd2(k):
        if k in (8, 16, 24): A.barrier(otok[k // 2 + 3])
        A(f"ds_read_b128 {v(T+(k%8)*4,4)}, v7 offset:{L_O+order[k]*1024}")
    A.barrier(otok[3], A.last_lg())
    pf.release()
    stamp()
    for k in range(4): rd2(k)
    for i in range(12, 16): o_issue(i)
    mains = []
    for k in range(32):
        def m(k=k):
            if k + 4 < 32: rd2(k + 4)
            A(f"{MF} {v(ACC[0],16)}, {v(WOF(k),4)}, {v(T+(k%8)*4,4)}, {v(ACC[0],16)}")
        mains.append(m)
    sc = f"""s_lshr_b32 s65, {sW}, 1
          s_lshl_b32 s65, s65, 1
          s_add_u32 s65, s65, {sHF}
          s_lshl_b32 s66, {sRB}, 2
          s_add_u32 s65, s65, s66
          s_lshl_b32 s66, {sCT}, 1
          s_and_b32 s62, {sW}, 1
          s_add_u32 s66, s66, s62
          s_mul_i32 s67, s65, 14
          s_add_u32 s67, s67, s66
          s_lshl_b32 s68, s67, 11
          s_add_u32 s68, s68, {WS_H}
          s_lshl_b32 s67, s67, 8
          s_add_u32 s67, s67, {WS_ST}
          s_lshl_b32 s65, s65, 4
          s_add_u32 s65, s65, s66
          s_lshl_b32 s65, s65, 2
          s_add_u32 s65, s65, 0x1000
          v_mov_b32 {v(TM)}, 0
          v_mov_b32 {v(TM+1)}, 0
          v_lshlrev_b32 v13, 3, v10
          v_lshl_add_u32 v13, v11, 2, v13
          s_sub_u32 s62, s67, s68
          v_and_b32 {v(TM+2)}, 0x80, v9
          v_add_u32 {v(TM+2)}, s62, {v(TM+2)}
          v_cmp_lt_u32 vcc, 31, v1
          v_cndmask_b32 v9, v9, {v(TM+2)}, vcc""".split("\n")
    HR = T + 48
    fl = L(sc)
    for d in range(8):
        fl.append(lambda d=d: A(f"v_accvgpr_read_b32 {v(HR+2*d+1)}, {a(B2R+d)}\nv_lshlrev_b32 {v(HR+2*d)}, 16, {v(HR+2*d+1)}\nv_and_b32 {v(HR+2*d+1)}, 0xffff0000, {v(HR+2*d+1)}"))
    rest = [pf.consume] * max(0, pf.synced - pf.n_c)
    for f in interleave(mains[:18], merge([pf.issue] * P['n_f'], rest), lead=2) + interleave(mains[18:], fl): f()
    PH = T + 32
    for d in range(8):
        A(f"v_cvt_pk_bf16_f32 {v(PH+d)}, {v(ACC[0]+2*d)}, {v(ACC[0]+2*d+1)}")
        if d == 3: A(f"buffer_store_dwordx4 {v(PH,4)}, v12, {SWS}, s68 offen sc1")
    A(f"buffer_store_dwordx4 {v(PH+4,4)}, v12, {SWS}, s68 offen offset:1024 sc1")
    for d in range(8):
        A(f"v_dot2c_f32_bf16 {v(TM)}, {sONE}, {v(PH+d)}\nv_dot2c_f32_bf16 {v(TM+1)}, {v(PH+d)}, {v(PH+d)}")
    A(f"v_permlane32_swap_b32 {v(TM)}, {v(TM+1)}\nv_add_f32 {v(TM)}, {v(TM)}, {v(TM+1)}")
    t = A(f"buffer_store_dword {v(TM)}, v13, {SWS}, s67 offen sc1")
    A.barrier(A.last_lg()); pf.release()
    pf.issue(P['n_g'])
    for r in range(0, 16, 2): A(f"v_pk_add_f32 {v(HR+r,2)}, {v(HR+r,2)}, {v(ACC[0]+r,2)}")
    ncs = [0]
    def cs1(n):
        for _ in range(n):
            s = ncs[0]
            A(f"{MS} {v(S16K,4)}, {v(SEL,4)}, {a(W1F+4*s,4)}, {'0' if s == 0 else v(S16K,4)}"); ncs[0] += 1
    cs1(min(pf.n_c, 28))
    A.wait(t)
    setflag("s65")
    rback("s68")
    stamp()
    A(f"""s_cmp_eq_u32 s2, 0
          s_cselect_b32 s62, 0, 0x7ffffff0
          s_mov_b64 exec, 1
          buffer_store_dword v14, v15, {SWS}, s62 offen sc1
          s_mov_b64 exec, -1""")
    while pf.n_i < 28: pf.issue()
    tgt = max(pf.n_i, min(28 + P['n_h'], pf.total - sum(P['n_p3'])))
    if pf.n_c < 28:
        tk = pf.sync_tok()
        while pf.n_i < tgt and pf.n_i < 28 + 6 and [f for f in pf.free if pf.ok(pf.n_i, f[0])]: pf.issue()
        A.barrier(tk)
        pf.consume(28 - pf.n_c)
        A.barrier(A.last_lg()); pf.release()
    while pf.n_i < tgt: pf.step()
    cs1(28 - ncs[0])
    W3 = ACC[2]
    A(f"""v_and_b32 v13, 16, v1
          v_cmp_ne_u32 vcc, 0, v13
          v_accvgpr_read_b32 {v(ACC[3])}, {a(B1R)}
          v_mov_b32 {v(W3+3)}, 0
          v_lshlrev_b32 {v(ACC[3])}, 16, {v(ACC[3])}
          v_cndmask_b32 {v(S16K)}, {v(S16K)}, {v(S16K+1)}, vcc
          v_cmp_gt_u32 vcc, 32, v1
          v_cndmask_b32 {v(S16K)}, 0, {v(S16K)}, vcc
          v_cndmask_b32 {v(ACC[3])}, 0, {v(ACC[3])}, vcc""")
    for l in split(S16K, TM, TM + 1): A(l)
    A(f"""v_cvt_pk_bf16_f32 {v(W3)}, {v(TM)}, {v(TM)}
          v_cvt_pk_bf16_f32 {v(W3+1)}, {v(TM+1)}, {v(ACC[3])}
          v_cvt_pk_bf16_f32 {v(W3+2)}, {v(ACC[3])}, 0""")
    A(f"""s_lshl_b32 s67, {sRB}, 8
          s_add_u32 s67, s67, 0x1000
          v_and_b32 v7, 15, v1
          v_min_u32 v7, 13, v7
          v_and_b32 v8, 48, v1
          v_add_lshl_u32 v7, v7, v8, 2""")
    poll_begin("v7", "s67")
    pf.drain()
    assert pf.n_c == pf.n_i
    A(f"""s_lshl_b32 s65, {sRB}, 2
          s_add_u32 s66, s65, {sW}
          s_mul_i32 s66, s66, {14*256}
          s_add_u32 s66, s66, {WS_ST}
          v_lshlrev_b32 v8, 3, v1
          s_mul_i32 s65, s65, {28*1024}
          s_and_b32 s68, {sRB}, 1
          s_lshl_b32 s68, s68, 1
          s_add_u32 s68, s68, {sW}
          s_and_b32 s68, s68, 3
          s_mul_i32 s68, s68, {7*1024}
          s_add_u32 s65, s65, s68
          s_add_u32 s65, s65, {WS_H}
          s_mul_i32 s68, {sW}, {7*1024}
          v_subrev_u32 v3, {96*K}, v5
          v_xor_b32 v4, 64, v3""")
    A.barrier(A.last_lg())
    pf.release(); pf.drop_below(116); pf.low = True
    stamp()
    poll_end("v7", "s67")
    stamp()
    htok = {}
    def h_issue(mt, i):
        if i % 4 == 0: t = dma("v12", SWS, "s68", (mt * 28 + i) * 1024, f"s_add_u32 s69, s65, {(mt*28+i)*1024}", "s69", "sc1")
        else: t = dma("v12", SWS, None, 0, None, "s69", "sc1", off=(i % 4) * 1024)
        htok[mt] = t
    PKD = T + 32
    SL = ACC[1]; EXT = ACC[3]; VAR = ACC[2] + 4; RS2 = ACC[2] + 6
    for i in range(7): h_issue(0, i)
    for i in range(3): A(f"buffer_load_dwordx2 {v(SL+2*i,2)}, v8, {SWS}, s66 offen offset:{i*512} sc1")
    A(f"v_add_u32 v7, {56*1024}, v12")
    A.barrier(htok[0])
    stamp()
    NR = 8; PD = 6
    def rd3(idx):
        base, off = ("v12", idx * 1024) if idx < 56 else ("v7", (idx - 56) * 1024)
        A(f"ds_read_b128 {v(T+(idx%NR)*4,4)}, {base} offset:{off}")
    for k in range(PD): rd3(k)
    for i in range(3, 7): A(f"buffer_load_dwordx2 {v(SL+2*i,2)}, v8, {SWS}, s66 offen offset:{i*512} sc1")
    sttok = {}
    def epi3(mt):
        acc = ACC[mt & 1]
        fs = []
        for r in range(0, 16, 2):
            for e in (r, r + 1): fs.append(lambda e=e: A(f"v_mul_f32 {v(acc+e)}, {v(acc+e)}, |{v(acc+e)}|"))
            fs.append(lambda r=r: A(f"v_cvt_pk_bf16_f32 {v(PKD+r//2)}, {v(acc+r)}, {v(acc+r+1)}"))
            fs.append(lambda r=r: A(f"v_pk_max_i16 {v(PKD+r//2)}, {v(PKD+r//2)}, 0"))
            if r == 6:
                fs.append(lambda: A(f"s_add_u32 s51, s50, {mt*112*1024}\nbuffer_store_dwordx4 {v(PKD,4)}, v12, {SWS}, s51 offen sc1"))
            if r == 14:
                def g(): sttok[mt] = A(f"buffer_store_dwordx4 {v(PKD+4,4)}, v12, {SWS}, s51 offen offset:1024 sc1")
                fs.append(g)
        return fs
    stw = [None]
    def stats_fill():
        ls = []
        for i in range(1, 7): ls.append(f"v_add_f32 {v(SL)}, {v(SL)}, {v(SL+2*i)}\nv_add_f32 {v(SL+1)}, {v(SL+1)}, {v(SL+2*i+1)}")
        mean, var, sig = SL + 4, SL + 6, SL + 5
        ls += [f"v_mov_b32 {v(SL+2)}, {v(SL)}\nv_mov_b32 {v(SL+3)}, {v(SL+1)}",
               f"s_add_u32 s62, {sW1K}, {L_MISC}\nv_lshl_add_u32 v13, v10, 4, s62\nv_mov_b32 {v(SL+11)}, 0",
               f"v_permlane32_swap_b32 {v(SL)}, {v(SL+2)}\nv_permlane32_swap_b32 {v(SL+1)}, {v(SL+3)}",
               f"v_add_f32 {v(SL)}, {v(SL)}, {v(SL+2)}\nv_add_f32 {v(SL+1)}, {v(SL+1)}, {v(SL+3)}",
               f"v_mul_f32 {v(mean)}, {fh(1.0/448)}, {v(SL)}\nv_mul_f32 {v(var)}, {fh(1.0/448)}, {v(SL+1)}",
               f"v_fma_f32 {v(var)}, -{v(mean)}, {v(mean)}, {v(var)}\nv_and_b32 {v(SL)}, 0xffff0000, {v(mean)}",
               f"v_max_f32 {v(var)}, 0, {v(var)}\nv_sub_f32 {v(SL+1)}, {v(mean)}, {v(SL)}",
               f"v_add_f32 {v(var)}, {fh(1e-5)}, {v(var)}\nv_cvt_pk_bf16_f32 {v(SL+8)}, -{v(SL)}, -{v(SL+1)}",
               f"v_sqrt_f32 {v(sig)}, {v(var)}\nv_rcp_f32 {v(var+1)}, {v(var)}",
               f"v_and_b32 {v(SL+2)}, 0xffff0000, {v(sig)}\nv_sub_f32 {v(SL+3)}, {v(sig)}, {v(SL+2)}",
               f"v_cvt_pk_bf16_f32 {v(SL+9)}, -{v(SL)}, {v(SL+2)}\nv_cvt_pk_bf16_f32 {v(SL+10)}, {v(SL+3)}, 0"]
        fs2 = L(ls)
        def w():
            A(f"ds_write_b128 v13, {v(SL+8,4)}")
            A(f"v_lshl_add_u32 v13, v10, 3, s62")
            stw[0] = A(f"ds_write_b64 v13, {v(var,2)} offset:512")
            A(f"v_lshlrev_b32 v13, 4, v10\nv_add_u32 v13, {L_MISC}, v13")
        fs2.append(w)
        return fs2
    def stats_get():
        for k in range(4): A(f"ds_read_b128 {v(EXT+4*k,4)}, v13 offset:{k*1024}")
    sg2 = f"""s_lshr_b32 s62, {sW}, 1
              s_lshl_b32 s62, s62, 1
              s_add_u32 s62, s62, {sHF}
              s_lshl_b32 s62, s62, 10
              s_add_u32 s62, s62, {L_MISC+512}
              v_lshl_add_u32 v13, v10, 3, s62
              ds_read_b32 {v(VAR)}, v13
              s_lshl_b32 s62, {sHF}, 10
              s_add_u32 s62, s62, {L_MISC+512+4}
              v_and_b32 v13, 0xf8, v0
              v_add_u32 v13, s62, v13
              ds_read_b32 {v(RS2)}, v13
              ds_read_b32 {v(RS2+1)}, v13 offset:2048
              s_mul_i32 s50, {sRB}, {4*112}
              s_lshl_b32 s62, {sJ}, 3
              s_add_u32 s50, s50, s62
              s_lshl_b32 s62, {sW}, 1
              s_add_u32 s50, s50, s62
              s_lshl_b32 s50, s50, 10
              s_add_u32 s50, s50, {WS_H1}
              s_lshl_b32 s66, {sRB}, 7
              s_lshl_b32 s62, {sJ}, 2
              s_add_u32 s66, s66, s62
              s_add_u32 s66, s66, {sW}
              s_lshl_b32 s66, s66, 2
              s_add_u32 s66, s66, 0x2000""".split("\n")
    p4s = f"""s_lshl_b32 s67, {sRB}, 7
          s_mul_i32 s62, {sW}, 14
          s_add_u32 s67, s67, s62
          s_lshl_b32 s67, s67, 2
          s_add_u32 s67, s67, 0x2000
          v_min_u32 v8, 13, v1
          v_lshlrev_b32 v8, 2, v8
          s_lshl_b32 s65, {sRB}, 2
          s_add_u32 s65, s65, {sHF}
          s_mul_i32 s68, s65, {32*896}
          s_mul_i32 s65, s65, 112
          s_mul_i32 s62, {sW}, 28
          s_add_u32 s65, s65, s62
          s_lshl_b32 s65, s65, 10
          s_add_u32 s65, s65, {WS_H1}
          s_lshl_b32 s62, {sCT}, 7
          s_add_u32 s68, s68, s62""".split("\n")
    FB = lambda n: a(224 + 4 * (n % 36), 4) if n % 36 < 8 else a(W1F + 4 * (n % 36 - 8), 4)
    nld = [0]
    def ld4():
        n = nld[0]; nld[0] += 1
        if n >= 56: return
        p, s = divmod(n, 28)
        if s % 4 == 0:
            A(f"""s_lshl_b32 s69, {sWOI}, 12
                  s_add_u32 s69, s69, s65
                  s_add_u32 {sWOI}, {sWOI}, 1
                  s_cmp_eq_u32 {sWOI}, 7
                  s_cselect_b32 {sWOI}, 0, {sWOI}""")
        A(f"buffer_load_dwordx4 {FB(n)}, v12, {SWS}, s69 offen offset:{(s%4)*1024} sc1")
    n1, n2, n3 = P['n_p3']
    for mt in range(4):
        mains = []
        for s in range(29):
            def m(s=s):
                d = v(ACC[mt & 1], 16)
                if s == 28:
                    A(f"{MF} {d}, {v(W3,4)}, {v(EXT+4*mt,4)}, {d}"); return
                idx = mt * 28 + s
                if s in (0, 14) and idx: stamp('p3')
                if s % 2 == 0:
                    for nxt in (idx + PD, idx + PD + 1):
                        if nxt < 112:
                            if nxt % 28 == 0:
                                A.barrier(htok[nxt // 28], stw[0] if nxt == 28 else None)
                                if nxt == 28: stats_get()
                                if nxt == 56: pf.give(112, 116); pf.give(0, 28)
                                if nxt == 84: pf.give(28, 56)
                            rd3(nxt)
                    A.wait(A.pend.get(f"v{T+((idx+1)%NR)*4}"))
                A(f"{MF} {d}, {a(W1F+4*s,4)}, {v(T+(idx%NR)*4,4)}, {'0' if s == 0 else d}")
            mains.append(m)
        H = lambda mt, r: [lambda i=i: h_issue(mt, i) for i in r]
        if mt == 0:
            seq = interleave(mains[:10], H(1, range(7))) + interleave(mains[10:22], merge(stats_fill(), H(2, range(4)))) + \
                  interleave(mains[22:], merge(L(sg2), H(2, range(4, 7))), lead=1)
        elif mt == 1:
            hs = [lambda r=r: A(f"v_mul_f32 {v(HR+r)}, {v(HR+r)}, {v(VAR)}") for r in range(16)]
            seq = interleave(mains[:4], H(3, range(2))) + interleave(mains[4:16], merge(epi3(0), H(3, range(2, 7)))) + interleave(mains[16:], merge(hs, [pf.issue] * n1))
        elif mt == 2:
            seq = mains[:3] + interleave(mains[3:11], epi3(1)) + interleave(mains[11:], L(p4s))
            if P['flagA'] < 0: seq = spread(seq, mains, [lambda: (A.wait(sttok[1]), setflag("s66"))], 28 + P['flagA'], 28 + P['flagA'])
            seq = spread(seq, mains, [pf.issue] * n2, 0, 28)
            if P['c_p3'][1]: seq = spread(seq, mains, [pf.consume] * P['c_p3'][1], 14, 27)
        else:
            seq = mains[:4] + interleave(mains[4:14], epi3(2)) + mains[14:]
            seq = spread(seq, mains, [pf.issue] * n3, 0, P['pollA'] - 1)
            if P['c_p3'][2]: seq = spread(seq, mains, [pf.consume] * P['c_p3'][2], 10, 27)
            def flagA(): A.wait(sttok[1]); setflag("s66")
            def early():
                poll_end("v8", "s67")
            if P['flagA'] >= 0: seq = spread(seq, mains, [flagA], P['flagA'], P['flagA'])
            seq = spread(seq, mains, [lambda: poll_begin("v8", "s67")], P['pollA'], P['pollA'])
            if P['early'] < 28:
                seq = spread(seq, mains, [early] + [ld4] * 8, P['early'], 28)
            else: seq += [early]
        for f in seq: f()
    stamp()
    LA = P['LA']
    while nld[0] < 6: ld4()
    for f in epi3(3): f()
    A(f"v_mov_b32 {v(TM)}, {v(RS2)}\nv_mov_b32 {v(TM+2)}, {v(RS2+1)}\ns_add_u32 s67, s67, 256\ns_add_u32 s66, s66, 256")
    nb = nld[0]
    def mf4(n):
        p, s = divmod(n, 28)
        for nt in range(2):
            d = v(ACC[2 * p + nt], 16)
            if s == 0:
                la = A.newlabel("Lia"); lb = A.newlabel("Lib")
                A(f"s_cmp_eq_u32 {sW}, {2*p+nt}")
                ins = f"{MF} {d}, {w2reg(0,nt)}, {FB(n)}, {v(HR,16)}"
                A.pre(ins)
                A.raw(f"    s_cbranch_scc1 {la}\n    {MF} {d}, {w2reg(0,nt)}, {FB(n)}, 0\n    s_branch {lb}\n{la}:")
                A(ins)
                A.label(lb)
            else:
                A(f"{MF} {d}, {w2reg(s,nt)}, {FB(n)}, {d}")
    def red_write(p):
        return [lambda nt=nt, q=q: A(f"ds_write_b128 v7, {v(ACC[2*p+nt]+4*q,4)} offset:{p*36864+(nt*4+q)*1088}") for nt in range(2) for q in range(4)]
    def red_read(p):
        for ww in range(4):
            A(f"ds_read_b128 {v(T+8*ww,4)}, v4 offset:{p*36864+ww*8*1088}")
            A(f"ds_read_b128 {v(T+8*ww+4,4)}, v4 offset:{p*36864+ww*8*1088+512}")
    def red_fin(p, packed):
        ls = []
        if packed:
            for d in range(0, 8, 2): ls += [f"v_pk_add_f32 {v(T+d,2)}, {v(T+d,2)}, {v(T+8+d,2)}"]
            for d in range(0, 8, 2): ls += [f"v_pk_add_f32 {v(T+16+d,2)}, {v(T+16+d,2)}, {v(T+24+d,2)}"]
            for d in range(0, 8, 2): ls += [f"v_pk_add_f32 {v(T+d,2)}, {v(T+d,2)}, {v(T+16+d,2)}"]
            for d in range(0, 8, 2): ls += [f"v_pk_mul_f32 {v(T+d,2)}, {v(T+d,2)}, {v(TM+2*p,2)} op_sel:[0,0] op_sel_hi:[1,0]"]
        else:
            for d in range(8): ls += [f"v_add_f32 {v(T+d)}, {v(T+d)}, {v(T+8+d)}", f"v_add_f32 {v(T+16+d)}, {v(T+16+d)}, {v(T+24+d)}"]
            for d in range(8): ls += [f"v_add_f32 {v(T+d)}, {v(T+d)}, {v(T+16+d)}"]
            for d in range(8): ls += [f"v_mul_f32 {v(T+d)}, {v(T+d)}, {v(TM+2*p)}"]
        for d in range(4): ls += [f"v_cvt_pk_bf16_f32 {v(T+32+d)}, {v(T+2*d)}, {v(T+2*d+1)}"]
        ls += [f"buffer_store_dwordx4 {v(T+32,4)}, v3, {SOUT}, s68 offen {P.get('outflag','')}", f"s_add_u32 s68, s68, {64*896}"]
        return L(ls)
    adr4 = f"""s_mul_i32 s62, {sW}, {8*1088}
          s_add_u32 s62, s62, {L_RED}
          v_add_u32 v7, s62, v12
          v_and_b32 v4, 7, v0
          v_mul_u32_u24 v4, 1088, v4
          v_lshrrev_b32 v5, 3, v0
          v_lshl_add_u32 v4, v5, 4, v4
          v_add_u32 v4, {L_RED}, v4
          v_mul_u32_u24 v5, 896, v5
          v_and_b32 v3, 7, v0
          v_lshl_add_u32 v3, v3, 4, v5""".split("\n")
    gate = 28 - LA + P['p4gap']
    done_adr = False; staged = pf.n_i
    for n in range(28):
        if n in (0, 8, 16, 24): stamp('p4')
        while nld[0] < min(28, n + LA + 1) and nld[0] < nb + 2 * (n + 1): ld4()
        if n == gate - 3: poll_begin("v8", "s67")
        if n == gate:
            assert nld[0] == 28
            poll_end("v8", "s67")
            A(f"s_add_u32 s65, s65, {224*1024}")
        if n >= gate:
            k = 0
            while nld[0] < n + LA + 1 and k < 2: ld4(); k += 1
        need = min(pf.total, 28 + 2 * (n + 3))
        k = 0
        while pf.n_c < need or (k < 3 and pf.n_c < staged): pf.consume(); k += 1
        if n >= nb - 2: pf.issue(P.get('p4w2', 2))
        mf4(n)
        if n == nb - 1: A.wait(sttok[3]); setflag("s66")
        if pf.n_c == pf.total and not done_adr:
            for l in adr4: A(l)
            A.barrier(A.last_lg())
            done_adr = True
    stamp()
    fin0 = None; rw = red_write(0)
    for n in range(28, 56):
        if n in (36, 44, 52): stamp('p4')
        k = 0
        while nld[0] < min(56, n + LA + 1) and k < 2: ld4(); k += 1
        mf4(n)
        if n >= 30 and rw:
            for f in rw[:2]: f()
            rw = rw[2:]
        if n == 38: A.barrier(A.last_lg()); red_read(0); fin0 = red_fin(0, False)
        if n > 40 and fin0:
            for f in fin0[:4]: f()
            fin0 = fin0[4:]
    assert not fin0
    stamp('p4')
    for f in red_write(1): f()
    A.barrier(A.last_lg())
    stamp('p4')
    red_read(1)
    for f in red_fin(1, True): f()
    stamp()
    A("s_branch Lfin")
    A.label("Lidle")
    A.raw("    s_waitcnt vmcnt(0)")
    setflag("s66")
    rback("s65")
    if P['helper']:
        A.raw("    s_waitcnt vmcnt(0)\n    s_barrier")
        A(f"""s_and_b32 s62, {sRB}, 1
              s_lshl_b32 s62, s62, 1
              s_and_b32 s63, {sJ}, 1
              s_add_u32 s62, s62, s63
              s_lshl_b32 s62, s62, 2
              s_add_u32 s62, s62, {sW}
              s_lshl_b32 s62, s62, 13
              v_lshlrev_b32 v2, 7, v1""")
        for i in range(13):
            A(f"buffer_load_dword v{16+i}, v2, {SW2}, s62 offen\ns_add_u32 s62, s62, {16*8192}")
        A.raw("    s_waitcnt vmcnt(0)")
    A.label("Lfin")
    if stamps:
        A.raw("    s_waitcnt lgkmcnt(0)")
        A(f"s_lshl_b32 s62, s2, 8\ns_add_u32 s62, s62, {WS_STAMP}\ns_cmp_lg_u32 {sW}, 0\ns_cbranch_scc1 Lend\ns_mov_b64 exec, 1")
        for i in range(ns[0]):
            A(f"v_mov_b32 v2, s{sreg(i)}\nv_mov_b32 v3, s{sreg(i)+1}\nbuffer_store_dwordx2 v[2:3], v15, {SWS}, s62 offen offset:{i*8}")
    A.label("Lend")
    A.raw("    s_endpgm")
    assert ns[0] <= 18, ns[0]
    k = NAME + "_kernel"
    return HDR + f"""; @launch grid=(256,1,1) block=(256,1,1) lds=163840
.amdgcn_target "amdgcn-amd-amdhsa--gfx950"
.text
.globl {k}
.p2align 8
.type {k},@function
{k}:
""" + A.text() + f""".section .rodata,"a"
.p2align 6
.amdhsa_kernel {k}
  .amdhsa_next_free_vgpr 512
  .amdhsa_next_free_sgpr 102
  .amdhsa_accum_offset 256
  .amdhsa_group_segment_fixed_size 0
  .amdhsa_kernarg_size 88
  .amdhsa_user_sgpr_count 2
  .amdhsa_user_sgpr_kernarg_segment_ptr 1
  .amdhsa_system_sgpr_workgroup_id_x 1
.end_amdhsa_kernel
"""

def spread(seq, mains, extra, lo, hi):
    out = list(seq); n = len(extra)
    pos = [lo + (i * (hi - lo + 1)) // n for i in range(n)]
    for p in sorted(set(pos), reverse=True):
        k = out.index(mains[p]) + 1
        out[k:k] = [extra[i] for i in range(n) if pos[i] == p]
    return out

if __name__ == "__main__":
    open("k7.s", "w").write(gen(False))
    open("k7_st.s", "w").write(gen("s_memrealtime"))
    open("k7_p1.s", "w").write(gen("s_memrealtime", tags=('p1',), skip=range(6, 17)))
    open("k7_p3.s", "w").write(gen("s_memrealtime", tags=('p3', 'p4'), skip=list(range(0, 13)) + [14, 15]))
```

```python
import sys, struct, copy
from dsl import *
NAME = "sequential_preLN__linear_attn_block__dense_activation_squared_relu__prompt"
HDR = open("cdna_kernels/" + NAME + ".s.ref").read().split("; Override launch")[0]
def f2u(x): return struct.unpack('<I', struct.pack('<f', x))[0]
def fh(x): return hex(f2u(x))
K = 1024
WS_FF = 0x1000; WS_FS = 0x11000; WS_KVP = 0x40000; WS_O = 0x200000; WS_H = 0x400000
WS_ST = 0x600000; WS_H1 = 0x800000; WS_STAMP = 0x1000000; WS_SIZE = 0x1100000
L_M1 = 156 * K; L_MISC = 112 * K; L_RED = 56 * K
SX, SWQ, SWO, SW1, SW2, SWS, SOUT, SB1, SB2 = [f"s[{b}:{b+3}]" for b in (8, 12, 16, 20, 24, 28, 32, 36, 40)]
sW, sRB, sJ, sCT, sHF = "s3", "s4", "s5", "s6", "s7"
sNON, sONE = "s60", "s61"
sW1K, sW1A, sW2P, sW2G, sW2B, sWOI, sW1B = "s52", "s53", "s55", "s56", "s57", "s58", "s54"
XF = 16; ACC = [128, 144, 160, 176]; T = 192
W1F = 0; W2A = 112; XR = 240; B2R = 248; B1R = 192 + 13
def v(b, n=1): return f"v{b}" if n == 1 else f"v[{b}:{b+n-1}]"
def a(b, n=1): return f"a{b}" if n == 1 else f"a[{b}:{b+n-1}]"
def w2reg(s, nt, off=0, n=4):
    return v(XF + s * 8 + nt * 4 + off, n) if s < 14 else a(W2A + (s - 14) * 8 + nt * 4 + off, n)
MF = "v_mfma_f32_32x32x16_bf16"; MS = "v_mfma_f32_16x16x32_bf16"
SPIN_MAX = 400000
NOP = (lambda: None, 0)

DEF = dict(warm=(), warmrot=25, p1pf=((3, 7),), mall=True, n_t=3, wo_q=4, n_q=5, g0=16, wo_c=0, n_d=6, n_e=8, n_f=12, n_g=6, n_h=27, n_p3=16, rback=True, codepf=True, helper=True,
           fl=(68, 97, 4, 22), early=98, pre4=2, gates=(8, 34, 60, 88), w2s=52, cap=5)

def merge2(x, y):
    if not y: return x
    out = []; ny = 0
    for i, f in enumerate(x):
        out.append(f)
        tgt = (i + 1) * len(y) // len(x)
        out += y[ny:tgt]; ny = tgt
    return out

def gen(stamps=False, **kw):
    P = dict(DEF); P.update(kw)
    A = Asm()
    ST = '' if P.get('plain') else 'sc1'
    ST1 = P.get('st1', 'sc1')
    def L(ls):
        out = []
        for s in ls:
            for l in s.split("\n"):
                if l.strip(): out.append(lambda l=l: A(l))
        return out
    ns = [0]; cnt = [0]
    sreg = lambda i: 70 + 2 * i
    def stamp(tag=None):
        if tag is None:
            cnt[0] += 1
            if cnt[0] - 1 in P.get('skip', ()): return
        elif tag not in P.get('tags', ()): return
        if stamps:
            b = sreg(ns[0]); A(f"{stamps} s[{b}:{b+1}]")
        ns[0] += 1
    def snap(): return (A.vm_n, A.vm_done, A.lg_n, A.lg_done, dict(A.pend), list(A.hist), A.slot, A.smem_out)
    def restore(s): A.vm_n, A.vm_done, A.lg_n, A.lg_done, A.pend, A.hist, A.slot, A.smem_out = s[0], s[1], s[2], s[3], dict(s[4]), list(s[5]), s[6], s[7]
    VMIR = T + 46
    def flag_items(off_s):
        return [lambda: A(f"s_mov_b64 exec, 1\nbuffer_store_dword v14, v15, {SWS}, {off_s} offen\ns_mov_b64 exec, -1")]
    def slow_loop(voff, off_s, dst, d):
        l = A.newlabel("Lpoll")
        A(f"s_mov_b32 s64, 0")
        A.label(l)
        A(f"buffer_load_dword {dst}, {voff}, {SWS}, {off_s} offen sc1")
        A(f"v_cmp_ne_u32 vcc, {dst}, v14")
        A(f"s_cbranch_vccz {d}")
        A(f"s_add_u32 s64, s64, 1\ns_and_b32 s62, s64, 15\ns_cbranch_scc1 {l}")
        A(f"s_mov_b32 s62, {WS_FF}\ns_mov_b32 s63, {WS_FS}")
        A(f"buffer_load_dword {dst}, {v(VMIR)}, {SWS}, s62 offen sc1")
        A(f"v_cmp_eq_u32 vcc, {dst}, v14")
        A(f"v_mov_b32 {dst}, 0x7ffffff0")
        A(f"v_cndmask_b32 {dst}, {dst}, {v(VMIR)}, vcc")
        A(f"buffer_store_dword v14, {dst}, {SWS}, s63 offen sc1")
        A(f"s_add_u32 s63, {off_s}, {WS_FS-WS_FF}")
        A(f"buffer_load_dword {dst}, {voff}, {SWS}, s63 offen sc1")
        A(f"v_cmp_ne_u32 vcc, {dst}, v14")
        A(f"s_cbranch_vccz {d}")
        A(f"s_cmp_lt_u32 s64, {SPIN_MAX}\ns_cbranch_scc1 {l}")
    def setflag(off_s):
        for f in flag_items(off_s): f()
    DUM = T + 45; W1HI = T + 44; SEL = T + 36; W3 = ACC[2]
    def rback(soff, voff="v9"):
        if P['rback']: A(f"buffer_load_dword {v(DUM)}, {voff}, {SWS}, {soff} offen sc1"); A.pend.pop(v(DUM), None)
    def poll_begin(voff, off_s, dst="v13"):
        A(f"buffer_load_dword {dst}, {voff}, {SWS}, {off_s} offen sc1")
    def poll_end(voff, off_s, dst="v13"):
        d = A.newlabel("Lpd")
        A(f"v_cmp_ne_u32 vcc, {dst}, v14")
        A(f"s_cbranch_vccz {d}")
        sv = snap()
        slow_loop(voff, off_s, dst, d)
        A.label(d)
        restore(sv)
    def spoll_begin(off_s):
        A(f"s_load_dwordx8 s[8:15], s[28:29], {off_s} {P.get('glc', '')}")
    def spoll_end(voff, off_s, dst="v13"):
        sl = A.newlabel("Lsl"); d = A.newlabel("Lsd")
        A(f"s_cmp_eq_u64 s[8:9], s[16:17]\ns_cbranch_scc0 {sl}\ns_cmp_eq_u64 s[10:11], s[16:17]\ns_cbranch_scc0 {sl}\ns_cmp_eq_u64 s[12:13], s[16:17]\ns_cbranch_scc0 {sl}")
        A(f"s_cmp_eq_u32 s14, s16\ns_cbranch_scc1 {d}")
        sv = snap()
        A.label(sl)
        A.fence()
        slow_loop(voff, off_s, dst, d)
        A.label(d)
        restore(sv)
    def split(src, hi, lo): return [f"v_and_b32 {v(hi)}, 0xffff0000, {v(src)}", f"v_sub_f32 {v(lo)}, {v(src)}, {v(hi)}"]

    class PF:
        total = 28 + 56
        def __init__(s):
            s.n_i = 0; s.n_r = 0; s.n_c = 0; s.tok = {}; s.where = {}; s.free = []; s.synced = 0; s.held = []; s.low = False; s.perm = list(range(28)); s.v1 = 'v3'
        def give(s, lo, hi): s.free += [(o * K, None) for o in range(lo, hi, 4)]
        def release(s): s.free += s.held; s.held = []
        def drop_below(s, kb): s.free = [f for f in s.free if f[0] >= kb * K]; s.held = [f for f in s.held if f[0] >= kb * K]
        def ok(s, i, o): return o >= 64 * K if i < 28 else (o >= 96 * K or (s.low and o < 64 * K))
        def avail(s): return len([f for f in s.free if s.ok(s.n_i, f[0])])
        def items(s, n):
            out = []
            for _ in range(n):
                i = s.n_r
                if i >= s.total: break
                s.n_r += 1
                k = i - 28
                if i >= 28 and k % 4 == 0:
                    out += L([f"s_mul_i32 {sW2P}, s{36 + (k // 4) % 7}, 14", f"s_add_u32 {sW2P}, {sW2P}, {sW2B if k < 28 else sW2G}"])
                def f0(i=i):
                    c = [f for f in s.free if s.ok(i, f[0])]
                    assert c, f"no free staging slot for piece {i}"
                    f = min(c, key=lambda f: f[0]) if i < 28 else c[0]; s.free.remove(f); A.wait(f[1]); s.where[i] = f[0]
                    A(f"s_add_u32 m0, {sW1K}, {f[0]}")
                out.append(f0)
                out.append(lambda i=i, k=k: A(f"s_add_u32 s59, {sW1A if s.perm[i] < 14 else sW1B}, {s.perm[i] * 16 * 3584}" if i < 28 else f"s_add_u32 s59, {sW2P}, {(k % 4) * 8 * 896}"))
                def f2(i=i):
                    s.tok[i] = A(f"buffer_load_dwordx4 {s.v1 if i < 28 else 'v2'}, {SW1 if i < 28 else SW2}, s59 offen lds"); s.n_i += 1
                out.append(f2)
            return out
        def issue(s, n=1):
            for f in s.items(n): f()
        def sync_tok(s):
            n = min(s.n_i, 28); s.synced = n
            return s.tok.get(n - 1)
        def can(s): return s.n_c < s.n_i and (s.n_c >= 28 or s.n_c < s.synced)
        def consume(s, n=1):
            for _ in range(n):
                if not s.can(): return
                i = s.n_c; o = s.where[i]
                if i < 28:
                    r, o2 = ("v4", o - 64 * K) if o < 96 * K else (v(W1HI), o - 96 * K)
                    A(f"ds_read_b64_tr_b16 {a(W1F+4*s.perm[i],2)}, {r} offset:{o2}")
                    A(f"ds_read_b64_tr_b16 {a(W1F+4*s.perm[i]+2,2)}, {r} offset:{o2+2048}")
                    s.held.append((o, None))
                else:
                    A.wait(s.tok[i])
                    k = i - 28
                    r0, r1, o2 = ("v5", "v6", o - 96 * K) if o >= 96 * K else ("v3", "v4", o)
                    A(f"ds_read_b64_tr_b16 {w2reg(k//2,0,2*(k%2),2)}, {r0} offset:{o2}")
                    t = A(f"ds_read_b64_tr_b16 {w2reg(k//2,1,2*(k%2),2)}, {r1} offset:{o2}")
                    s.free.append((o, t))
                s.n_c += 1
        def step(s):
            if s.n_i - s.n_c >= 8 or not s.avail(): s.consume()
            s.issue()
        def drain(s):
            while s.can(): s.consume()

    stamp()
    A(f"""s_cmp_ge_u32 s2, 256
          s_cbranch_scc1 Lend
          s_load_dwordx16 s[44:59], s[0:1], 0
          s_load_dwordx2 s[32:33], s[0:1], 64
          s_load_dwordx2 s[28:29], s[0:1], 80
          v_lshrrev_b32 v2, 6, v0
          v_and_b32 v1, 63, v0
          s_and_b32 s62, s2, 7
          s_lshr_b32 s63, s2, 3
          v_readfirstlane_b32 {sW}, v2
          s_lshr_b32 s64, s63, 4
          s_lshl_b32 {sRB}, s62, 1
          s_add_u32 {sRB}, {sRB}, s64
          s_and_b32 {sJ}, s63, 15
          s_mul_i32 s64, s64, 3
          s_add_u32 {sCT}, {sJ}, s64
          s_add_u32 {sCT}, {sCT}, s62
          s_mul_i32 s64, {sCT}, 37
          s_lshr_b32 s64, s64, 8
          s_mul_i32 s64, s64, 7
          s_sub_u32 {sCT}, {sCT}, s64""")
    VQ = T + 35; RWL = T + 34
    A(f"""v_lshrrev_b32 v10, 3, v1
          v_and_b32 v11, 7, v1
          v_lshrrev_b32 v12, 1, v10
          v_xor_b32 v13, v11, v12
          v_mul_u32_u24 v14, 896, v10
          v_lshl_add_u32 v2, v13, 4, v14
          v_xor_b32 v13, 4, v13
          v_lshl_add_u32 v3, v13, 4, v14
          v_add_u32 v3, {6144}, v3
          v_add_u32 v4, {2*6144}, v2
          v_add_u32 v5, {2*6144}, v3
          v_lshrrev_b32 v10, 2, v1
          v_and_b32 v11, 3, v1
          v_mul_u32_u24 v10, 2688, v10
          v_lshl_add_u32 {v(VQ)}, v11, 4, v10
          v_add_u32 v6, 128, {v(VQ)}
          s_lshl_b32 s65, {sRB}, 2
          s_add_u32 s65, s65, {sW}
          s_mul_i32 s65, s65, {32*896}
          s_lshl_b32 s62, {sCT}, 7
          s_add_u32 s65, s65, s62
          s_mul_i32 s66, {sJ}, 56
          s_and_b32 s66, s66, 0xfffffff0
          s_add_u32 s66, s66, {896-128}
          s_mul_i32 s62, {sW}, {16*2688}
          s_add_u32 s66, s66, s62
          s_mul_i32 s62, {sCT}, {64*2688}
          s_add_u32 s66, s66, s62
          s_lshl_b32 s68, {sW}, 12
          s_lshl_b32 s69, {sW}, 11
          s_mov_b32 s10, {2048*896}
          s_mov_b32 s11, 0x20000
          s_mov_b32 s14, {448*2688}
          s_mov_b32 s15, 0x20000""")
    A.wait_all()
    A("s_mov_b32 s12, s46\ns_and_b32 s13, s47, 0xffff\ns_mov_b32 s8, s44\ns_and_b32 s9, s45, 0xffff")
    def srd(d, p, n):
        b = int(d[2:d.index(':')])
        if b != p: A(f"s_mov_b32 s{b}, s{p}")
        A(f"s_and_b32 s{b+1}, s{p+1}, 0xffff\ns_mov_b32 s{b+2}, {n}\ns_mov_b32 s{b+3}, 0x20000")
    SUM, SUM2, SQ, SQ2, MEAN, RSTD, CSK, CSV = [T + 24 + i for i in range(8)]
    TG = T + 32; TM = T + 40
    S16 = [T + 16, T + 20]
    RX, RW_ = T, T + 4
    ctok = {}
    def wrapW(i): return L([f"s_add_u32 s66, s66, {64*2688}"]) + [lambda: A(f"s_cmp_eq_u32 {sCT}, {6-i}\ns_cselect_b32 s62, {448*2688}, 0")] + L([f"s_sub_u32 s66, s66, s62"])
    def chunk_items(i):
        slot = (i % 4) * 24 * K
        out = L([f"s_add_u32 m0, s69, {slot + 16*K}", f"s_cmp_eq_u32 {sCT}, {6-i}"][:1] + [f"buffer_load_dwordx4 v6, {SWQ}, s66 offen lds",
                 f"buffer_load_dwordx4 {v(VQ)}, {SWQ}, s66 offen offset:1024 lds", f"s_add_u32 m0, s68, {slot}", f"s_add_u32 s66, s66, {64*2688}"])
        out += L([f"buffer_load_dwordx4 v{2+b}, {SX}, s65 offen offset:{b*1024} lds" for b in range(3)])
        def g2(): ctok[i] = A(f"buffer_load_dwordx4 v5, {SX}, s65 offen offset:3072 lds")
        out.append(g2)
        out += L([f"s_add_u32 s65, s65, 128"])
        out.append(lambda: A(f"s_cmp_eq_u32 {sCT}, {6-i}\ns_cselect_b32 s62, 896, 0\ns_cselect_b32 s63, {448*2688}, 0"))
        out += L([f"s_sub_u32 s65, s65, s62", f"s_sub_u32 s66, s66, s63"])
        return out
    L_WQ = 96 * K
    wq_tok = [None]
    def wq_items():
        out = L([f"s_sub_u32 s66, s66, {896-128}"])
        for i in range(7):
            out += L([f"s_add_u32 m0, {sW1K}, {L_WQ + i*4096}"])
            def g(): wq_tok[0] = A(f"buffer_load_dwordx4 {v(VQ)}, {SWQ}, s66 offen lds")
            out.append(g)
            if i < 6: out += wrapW(i)
        return out
    for f in chunk_items(0): f()
    A(f"s_load_dword {sNON}, s[28:29], 0")
    if P['codepf']:
        A.raw(f"    s_getpc_b64 s[34:35]\nLpc0:")
        A(f"""s_sub_u32 s34, s34, Lpc0-{NAME}_kernel
              s_subb_u32 s35, s35, 0
              s_lshr_b32 s64, s2, 3
              s_lshl_b32 s64, s64, 2
              s_add_u32 s64, s64, {sW}
              s_lshl_b32 s64, s64, 8
              s_min_u32 s64, s64, Lend-{NAME}_kernel-192
              s_add_u32 s34, s34, s64
              s_addc_u32 s35, s35, 0""")
        for k in range(4): A(f"s_load_dword s{50+(k&1)}, s[34:35], {64*k}"); A.pend.pop(f"s{50+(k&1)}", None)
    c1 = chunk_items(1)
    for f in c1[:6]: f()
    srd(SWO, 48, 448 * 896); srd(SW1, 52, 448 * 3584); srd(SB1, 54, 3584); srd(SW2, 56, 1792 * 896); srd(SB2, 58, 896); srd(SOUT, 32, 2048 * 896)
    srd(SWS, 28, WS_SIZE)
    A(f"""s_cmp_ge_u32 {sJ}, 7
          s_cselect_b32 {sHF}, 1, 0
          s_mov_b32 {sONE}, 0x3f803f80
          v_mov_b32 v15, 0
          v_and_b32 v10, 31, v1
          v_lshrrev_b32 v11, 5, v1
          v_bfe_u32 v13, v1, 1, 3
          v_xor_b32 v12, v13, v11
          v_lshlrev_b32 v12, 4, v12
          v_lshl_add_u32 {v(RX)}, v10, 7, v12
          v_add_u32 {v(RX)}, s68, {v(RX)}
          s_lshl_b32 s59, {sW}, 5
          v_xor_b32 {v(RX)}, s59, {v(RX)}
          v_xor_b32 {v(RX+1)}, 32, {v(RX)}
          v_xor_b32 {v(RX+2)}, 64, {v(RX)}
          v_xor_b32 {v(RX+3)}, 0x60, {v(RX)}
          s_lshr_b32 s64, {sW}, 1
          s_lshl_b32 s64, s64, 1
          s_add_u32 s64, s64, {sHF}
          s_lshl_b32 s64, s64, 12
          s_and_b32 s59, {sW}, 1
          s_lshl_b32 s59, s59, 2
          v_xor_b32 v12, s59, v13
          v_lshlrev_b32 v12, 4, v12
          v_lshl_add_u32 v12, v10, 7, v12
          v_lshl_add_u32 v12, v11, 3, v12
          v_add_u32 v12, s64, v12
          v_xor_b32 v7, 16, v12
          v_xor_b32 v8, 32, v12
          v_xor_b32 v9, 48, v12
          v_bfe_u32 v13, v1, 4, 1
          v_and_b32 v14, 3, v1
          v_lshl_add_u32 v14, v13, 2, v14
          s_and_b32 s64, {sJ}, 1
          v_add_u32 v14, s64, v14
          v_and_b32 v14, 7, v14
          v_lshlrev_b32 v14, 3, v14
          v_bfe_u32 v13, v1, 2, 2
          v_lshl_add_u32 v13, v11, 3, v13
          v_lshl_add_u32 {v(RWL)}, v13, 6, v14
          s_add_u32 s59, s69, {16*K}
          v_add_u32 {v(RW_)}, s59, {v(RWL)}
          v_xor_b32 {v(RW_+1)}, 0x800, {v(RW_)}
          v_xor_b32 {v(RW_+2)}, 0x1000, {v(RW_)}
          v_xor_b32 {v(RW_+3)}, 0x1800, {v(RW_)}
          v_lshrrev_b32 v13, 4, v1
          v_xor_b32 v13, v13, v1
          v_and_b32 v13, 1, v13
          v_cmp_eq_u32 vcc, 0, v13
          v_mov_b32 v13, {sONE}
          v_mov_b32 {v(SUM)}, 0
          v_mov_b32 {v(SUM2)}, 0
          v_cndmask_b32 {v(SEL)}, 0, v13, vcc
          v_mov_b32 {v(SQ)}, 0
          v_mov_b32 {v(SQ2)}, 0""")
    for d in range(1, 4): A(f"v_mov_b32 {v(SEL+d)}, {v(SEL)}")
    for r in range(T, T + 8): A(f"v_add_u32 {v(r+8)}, {48*K}, {v(r)}")
    nsidx = [0, 1, 15, 2, 15, 3, 15, 4, 5, 15, 6, 15, 7, 15, 8, 9]
    tb64 = sum(x << (4 * i) for i, x in enumerate(nsidx))
    A(f"""s_lshl_b32 {sW1K}, {sW}, 10
          s_lshl_b32 {sW1A}, {sJ}, 8
          s_mul_i32 s64, {sW}, {4*3584}
          s_add_u32 {sW1A}, {sW1A}, s64
          s_and_b32 s64, {sRB}, 1
          s_mul_i32 s59, s64, {14*16*3584}
          s_sub_u32 {sW1B}, {sW1A}, s59
          s_add_u32 {sW1A}, {sW1A}, s59
          s_mul_i32 s67, s64, 10
          s_lshl_b32 s64, s64, 1
          s_add_u32 s64, s64, {sHF}
          s_lshl_b32 {sWOI}, s64, 2
          s_mul_i32 {sW2B}, {sW}, {32*896}
          s_lshl_b32 s64, {sCT}, 7
          s_add_u32 {sW2B}, {sW2B}, s64
          s_mul_i32 s64, {sHF}, {128*896}
          s_sub_u32 {sW2G}, {sW2B}, s64
          s_add_u32 {sW2G}, {sW2G}, {128*896}
          s_add_u32 {sW2B}, {sW2B}, s64
          s_mov_b32 s48, {hex(tb64 & 0xffffffff)}
          s_mov_b32 s49, {hex(tb64 >> 32)}
          s_lshl_b32 s64, {sJ}, 2
          s_lshr_b64 s[48:49], s[48:49], s64
          s_and_b32 s48, s48, 15
          s_add_u32 s67, s67, s48
          s_lshl_b32 s67, s67, 2
          s_add_u32 s67, s67, {sW}
          s_and_b32 s64, s2, 7
          s_mul_i32 s64, s64, {P['warmrot']}
          s_add_u32 s67, s67, s64
          s_cmp_eq_u32 s48, 15
          s_cselect_b32 s67, 0x4000, s67
          s_mov_b32 s44, {fh(1e-6)}
          s_mov_b32 s45, {fh(1e-6)}
          s_mov_b32 s46, {fh(1.4426950408889634)}
          s_mov_b32 s47, {fh(1.4426950408889634)}""")
    for f in c1[6:]: f()
    stamp()
    X0 = lambda s: XF + s * 4
    def dots(steps):
        if P.get('nodots'): return
        for s in steps:
            for d in range(4):
                A(f"v_dot2c_f32_bf16 {v(SUM + (d & 1))}, {sONE}, {v(X0(s)+d)}")
                A(f"v_dot2c_f32_bf16 {v(SQ + (d & 1))}, {v(X0(s)+d)}, {v(X0(s)+d)}")
    stat_fin = [f"v_add_f32 {v(SUM)}, {v(SUM)}, {v(SUM2)}", f"v_add_f32 {v(SQ)}, {v(SQ)}, {v(SQ2)}",
          f"v_mov_b32 {v(SUM2)}, {v(SUM)}", f"v_mov_b32 {v(SQ2)}, {v(SQ)}", f"v_and_b32 v13, 16, v1", f"v_cmp_ne_u32 vcc, 0, v13",
          f"v_permlane32_swap_b32 {v(SUM)}, {v(SUM2)}", f"v_permlane32_swap_b32 {v(SQ)}, {v(SQ2)}",
          f"v_add_f32 {v(SUM)}, {v(SUM)}, {v(SUM2)}", f"v_add_f32 {v(SQ)}, {v(SQ)}, {v(SQ2)}",
          f"v_mul_f32 {v(MEAN)}, {fh(1.0/448)}, {v(SUM)}", f"v_mul_f32 {v(RSTD)}, {fh(1.0/448)}, {v(SQ)}",
          f"v_fma_f32 {v(RSTD)}, -{v(MEAN)}, {v(MEAN)}, {v(RSTD)}",
          f"v_max_f32 {v(RSTD)}, 0, {v(RSTD)}", f"v_add_f32 {v(RSTD)}, {fh(1e-5)}, {v(RSTD)}", f"v_rsq_f32 {v(RSTD)}, {v(RSTD)}"]
    def phi_pair(r, dst, t0):
        A(f"""v_pk_mul_f32 {v(t0,2)}, {v(r,2)}, s[46:47]
              v_max_f32 {v(r)}, s44, {v(r)}
              v_max_f32 {v(r+1)}, s44, {v(r+1)}
              v_exp_f32 {v(t0)}, {v(t0)} clamp
              v_exp_f32 {v(t0+1)}, {v(t0+1)} clamp""")
        return lambda: A(f"""v_pk_add_f32 {v(r,2)}, {v(r,2)}, {v(t0,2)}
              v_cvt_pk_bf16_f32 {v(dst)}, {v(r)}, {v(r+1)}""")
    def addr2():
        A(f"""v_lshrrev_b32 v2, 3, v1
              v_and_b32 v3, 7, v1
              v_bfe_u32 v4, v1, 4, 1
              v_lshlrev_b32 v5, 2, v4
              v_xor_b32 v3, v3, v5
              v_mul_u32_u24 v2, 896, v2
              v_lshl_add_u32 v2, v3, 4, v2
              v_lshrrev_b32 v5, 4, v1
              v_and_b32 v3, 15, v1
              v_lshlrev_b32 v6, 2, v5
              v_xor_b32 v3, v3, v6
              v_mul_u32_u24 v5, 3584, v5
              v_lshl_add_u32 v3, v3, 4, v5
              v_lshlrev_b32 v9, 7, v10
              v_bfe_u32 v7, v1, 2, 2
              v_lshl_add_u32 v8, v11, 2, v7
              v_lshlrev_b32 v5, 5, v4
              v_and_b32 v6, 3, v1
              v_lshl_add_u32 v5, v6, 3, v5
              v_xor_b32 v6, {sW}, v7
              v_lshl_add_u32 v4, v6, 6, v5
              v_lshl_add_u32 v4, v8, 8, v4
              v_add_u32 {v(W1HI)}, {96*K}, v4
              v_add_u32 v4, {64*K}, v4
              v_lshrrev_b32 v6, 1, v7
              v_lshl_add_u32 v5, v6, 6, v5
              v_lshl_add_u32 v5, v8, 7, v5
              s_and_b32 s64, {sW}, 1
              s_lshl_b32 s64, s64, 6
              v_xor_b32 v8, s64, v5
              s_add_u32 s64, {sW1K}, {96*K}
              v_add_u32 v5, s64, v5
              v_xor_b32 v6, 64, v5""")
    def wo_items():
        out = [lambda: A(f"""s_lshl_b32 s62, {sWOI}, 2
                  s_add_u32 s62, s62, {sW}
                  s_lshl_b32 m0, s62, 10
                  s_mul_i32 s62, s62, {8*896}
                  s_lshl_b32 s63, {sCT}, 7
                  s_add_u32 s62, s62, s63
                  buffer_load_dwordx4 v2, {SWO}, s62 offen lds
                  s_add_u32 {sWOI}, {sWOI}, 1
                  s_cmp_eq_u32 {sWOI}, 14
                  s_cselect_b32 {sWOI}, 0, {sWOI}""")] * 14
        return out + [lambda: A(f"s_mov_b32 m0, {56*1024}\ns_mov_b32 s62, {448*896}\nbuffer_load_dwordx4 v2, {SWO}, s62 offen lds")]
    def wo_all():
        for f in wo_items(): f()
    B1X = ACC[3] + 15
    def small_loads():
        A(f"""s_lshl_b32 s62, {sJ}, 8
              s_lshl_b32 s63, {sW}, 6
              s_add_u32 s62, s62, s63
              v_lshlrev_b32 v7, 1, v10
              buffer_load_ushort {v(B1X)}, v7, {SB1}, s62 offen
              s_lshl_b32 s62, {sCT}, 7
              s_and_b32 s63, {sW}, 1
              s_lshl_b32 s63, s63, 6
              s_add_u32 s62, s62, s63
              v_lshlrev_b32 v7, 3, v11""")
        for q in range(4): A(f"buffer_load_dwordx2 {a(B2R+2*q,2)}, v7, {SB2}, s62 offen offset:{q*16}")
    order = [h * 2 + u for h in (0, 1, 8, 9, 2, 3, 10, 11, 4, 5, 12, 13, 6, 7, 14, 15) for u in range(2)]
    WOF = lambda k: W2A + 4 * k
    def rdwo(k):
        s = order[k]; row = 28 * (s // 2) + 16 * (s % 2)
        A(f"ds_read_b64_tr_b16 {a(WOF(k),2)}, v8 offset:{row*128}")
        A(f"ds_read_b64_tr_b16 {a(WOF(k)+2,2)}, v8 offset:{row*128+1024}")
    def resid():
        for d in range(8):
            A(f"v_accvgpr_read_b32 {v(TM)}, {a(XR+d)}")
            A(f"v_lshlrev_b32 {v(ACC[0]+2*d)}, 16, {v(TM)}\nv_and_b32 {v(ACC[0]+2*d+1)}, 0xffff0000, {v(TM)}")
    def prefetch_block(pf):
        pf.give(64, 156)
        pf.issue(P['n1'])
        wo_all(); small_loads()
        A.barrier(pf.sync_tok(), A.last_vm())
    def bases():
        A(f"""s_and_b32 s62, {sW}, 1
              s_lshl_b32 s62, s62, 1
              s_add_u32 s62, s62, {sHF}
              s_lshl_b32 s63, {sRB}, 2
              s_add_u32 s62, s62, s63
              s_lshl_b32 s62, s62, 1
              s_lshr_b32 s64, {sW}, 1
              s_add_u32 s62, s62, s64
              s_lshl_b32 s8, s62, 5
              s_add_u32 s8, s8, {WS_FF}
              s_lshl_b32 s9, s62, 14
              s_add_u32 s9, s9, {WS_O}
              s_and_b32 s10, {sW}, 1
              s_lshl_b32 s10, s10, 15
              s_lshl_b32 s62, s64, 14
              s_add_u32 s10, s10, s62
              s_lshl_b32 s64, s64, 1
              s_add_u32 s64, s64, {sHF}
              s_add_u32 s64, s64, s63
              s_lshl_b32 s62, {sCT}, 1
              s_and_b32 s59, {sW}, 1
              s_add_u32 s62, s62, s59
              s_mul_i32 s11, s64, 14
              s_add_u32 s11, s11, s62
              s_lshl_b32 s12, s11, 8
              s_add_u32 s12, s12, {WS_ST}
              s_lshl_b32 s11, s11, 11
              s_add_u32 s11, s11, {WS_H}
              s_lshl_b32 s13, s64, 4
              s_add_u32 s13, s13, s62
              s_lshl_b32 s13, s13, 2
              s_add_u32 s13, s13, {WS_FF+0x1000}
              s_lshl_b32 s14, {sRB}, 8
              s_add_u32 s14, s14, {WS_FF+0x1000}
              s_add_u32 s15, s63, {sW}
              s_mul_i32 s15, s15, {7*512}
              s_add_u32 s15, s15, {WS_ST}
              s_mul_i32 s68, {sW}, {7*1024}
              s_mul_i32 s65, s63, {28*1024}
              s_and_b32 s62, {sRB}, 1
              s_lshl_b32 s62, s62, 1
              s_add_u32 s62, s62, {sW}
              s_and_b32 s62, s62, 3
              s_mul_i32 s62, s62, {7*1024}
              s_add_u32 s65, s65, s62
              s_add_u32 s65, s65, {WS_H}
              s_and_b32 s59, {sJ}, 1
              s_mul_i32 s62, s59, {28*1024}
              s_sub_u32 s47, s65, s62
              s_add_u32 s65, s65, s62
              s_lshl_b32 s62, {sJ}, 2
              s_add_u32 s62, s62, {sW}
              s_mul_i32 s50, {sRB}, {4*112*1024}
              s_lshl_b32 s64, s62, 11
              s_add_u32 s50, s50, s64
              s_add_u32 s50, s50, {WS_H1}
              s_mul_i32 s64, s59, {112*1024}
              s_sub_u32 s51, s50, s64
              s_add_u32 s51, s51, {112*1024}
              s_add_u32 s50, s50, s64
              s_lshl_b32 s67, {sRB}, 10
              s_lshl_b32 s62, {sW}, 6
              s_add_u32 s67, s67, s62
              s_add_u32 s67, s67, {WS_FF+0x2000}
              s_lshl_b32 s62, s59, 5
              s_add_u32 s66, s67, s62
              s_lshr_b32 s62, {sJ}, 1
              s_lshl_b32 s62, s62, 2
              s_add_u32 s66, s66, s62
              s_lshl_b32 s62, {sHF}, 5
              s_sub_u32 s45, s67, s62
              s_add_u32 s45, s45, {32+256}
              s_add_u32 s67, s67, s62
              s_add_u32 s63, s63, {sHF}
              s_mul_i32 s48, s63, {32*896}
              s_lshl_b32 s62, {sCT}, 7
              s_add_u32 s48, s48, s62
              s_mul_i32 s49, s63, {112*1024}
              s_lshl_b32 s62, {sW}, 11
              s_add_u32 s49, s49, s62
              s_add_u32 s49, s49, {WS_H1}
              s_lshl_b32 s62, {sHF}, 13
              s_sub_u32 s44, s49, s62
              s_add_u32 s44, s44, 8192
              s_add_u32 s49, s49, s62""")
    def tag_setup():
        return [f"s_add_u32 {sNON}, {sNON}, 1", f"s_mul_i32 s64, {sNON}, 0x9e3779b1", f"v_mov_b32 v14, {sNON}",
              f"v_and_b32 {v(TG)}, 7, v1", f"v_lshlrev_b32 {v(TG)}, 2, {v(TG)}", f"v_lshrrev_b32 {v(TG)}, {v(TG)}, s64",
              f"v_and_b32 {v(TG)}, 15, {v(TG)}", f"v_lshl_or_b32 {v(TG)}, {v(TG)}, 15, {v(TG)}", f"v_lshrrev_b32 {v(TG+1)}, 2, {v(TG)}",
              f"v_and_b32 {v(TG)}, 0x10001, {v(TG)}", f"v_and_b32 {v(TG+1)}, 0x10001, {v(TG+1)}"]
    def warm_items(srd_, add):
        def g():
            A(f"""s_add_u32 s50, s67, {add}
                  s_cmp_ge_u32 s50, 196
                  s_cselect_b32 s51, 196, 0
                  s_sub_u32 s50, s50, s51
                  s_lshl_b32 s50, s50, 13
                  v_lshlrev_b32 {v(T+46)}, 7, v1
                  buffer_load_dword {v(DUM)}, {v(T+46)}, {srd_}, s50 offen""")
            A.pend.pop(v(DUM), None)
        return [g]
    def flag_touch():
        A(f"""v_lshlrev_b32 {v(T+46)}, 7, v1
              s_lshl_b32 s50, {sRB}, 8
              s_mul_i32 s51, {sRB}, 768
              s_add_u32 s51, s51, {0x1000 - 256}
              s_add_u32 s50, s50, {WS_FF}
              s_mov_b64 exec, 0xffc
              v_add_u32 {v(T+46)}, {0x1000 - 256}, {v(T+46)}
              s_mov_b64 exec, 0xff0
              v_add_u32 {v(T+46)}, s51, {v(T+46)}
              s_mov_b64 exec, 0xfff
              buffer_load_dword {v(DUM)}, {v(T+46)}, {SWS}, s50 offen sc1
              s_mov_b64 exec, -1""")
        A.pend.pop(v(DUM), None)
    def mall_go():
        if P.get('ftouch', True): flag_touch()
        A(f"""v_lshlrev_b32 {v(T+46)}, 7, v1
              s_lshl_b32 s50, {sJ}, 8
              s_lshl_b32 s51, {sCT}, 7
              s_mov_b64 exec, 3
              buffer_load_dword {v(DUM)}, {v(T+46)}, {SB1}, s50 offen""")
        A.pend.pop(v(DUM), None)
        A(f"s_mov_b64 exec, 1\nbuffer_load_dword {v(DUM)}, v15, {SB2}, s51 offen\ns_mov_b64 exec, -1"); A.pend.pop(v(DUM), None)
        A(f"""s_lshl_b32 s50, s2, 2
              s_add_u32 s50, s50, {sW}
              s_lshl_b32 s51, s50, 9
              s_mul_i32 s50, s50, {13*128}
              v_lshlrev_b32 {v(T+46)}, 7, v1
              s_mov_b64 exec, 0xf
              buffer_load_dword {v(DUM)}, {v(T+46)}, {SWO}, s51 offen""")
        A.pend.pop(v(DUM), None)
        A(f"s_mov_b64 exec, 0x1fff\nbuffer_load_dword {v(DUM)}, {v(T+46)}, {SW1}, s50 offen"); A.pend.pop(v(DUM), None)
        A(f"buffer_load_dword {v(DUM)}, {v(T+46)}, {SW2}, s50 offen\ns_mov_b64 exec, -1"); A.pend.pop(v(DUM), None)
    pf = PF(); pf.give(124, 156)
    p1pf = dict(P.get('p1pf', ()))
    if p1pf.get(3) == 7: pf.give(96, 124)
    if p1pf:
        pf.v1 = v(T + 62)
        A(f"""v_lshrrev_b32 v13, 4, v1
              v_and_b32 v14, 15, v1
              v_lshlrev_b32 {v(TM)}, 2, v13
              v_xor_b32 v14, v14, {v(TM)}
              v_mul_u32_u24 v13, 3584, v13
              v_lshl_add_u32 {v(T+62)}, v14, 4, v13
              v_bfe_u32 v13, v1, 2, 2
              v_lshl_add_u32 v14, v11, 2, v13
              v_xor_b32 v13, {sW}, v13
              v_lshlrev_b32 v13, 6, v13
              v_lshl_add_u32 v13, v14, 8, v13
              v_bfe_u32 v14, v1, 4, 1
              v_lshl_add_u32 v13, v14, 5, v13
              v_and_b32 v14, 3, v1
              v_lshl_add_u32 v13, v14, 3, v13
              v_add_u32 {v(W1HI)}, {96*K}, v13""")
    WF = lambda s: ACC[2] + (s % 4) * 8
    def rd1(s):
        c, t = divmod(s, 4); so = (c % 2) * 24 * K
        b = 8 if c % 4 >= 2 else 0
        out = []
        if t == 0:
            def cb():
                A.barrier(ctok[c], A.last_lg()); stamp('p1')
                pf.release()
                if c == 5: pf.drop_below(124)
                pf.synced = sum(n for cc, n in p1pf.items() if cc < c)
            out.append(cb)
            if c == 0: out += L([f"ds_read_b64 {a(XR+2*q,2)}, {r}" for q, r in enumerate(("v12", "v7", "v8", "v9"))])
        if c < 6: out += L([f"ds_read_b128 {v(X0(s),4)}, {v(b+RX+t)} offset:{so}"])
        elif t == 0: out += L([f"ds_read_b128 {v(X0(s+u),4)}, {v(b+RX+u)} offset:{so}" for u in range(4)])
        out += L([f"ds_read_b64_tr_b16 {v(WF(s)+2*k,2)}, {v(b+RW_+t)} offset:{so+o}" for k, o in enumerate((0, 256, 1024, 1280))])
        return out
    DB = P.get('DB', 3)
    for s in range(DB):
        for f in rd1(s): f()
    mains, pres, streams, first = [], [], [], {}
    for s in range(28):
        first[s] = len(mains)
        z = lambda d: '0' if s == 0 else d
        for kv in range(2):
            mains.append(lambda kv=kv, s=s, c_=z(v(ACC[kv], 16)): A(f"{MF} {v(ACC[kv],16)}, {v(X0(s),4)}, {v(WF(s)+4*kv,4)}, {c_}")); pres.append(NOP)
        if s % 4 == 0:
            mains.append(lambda s=s, c0=z(v(S16[0], 4)), c1=z(v(S16[1], 4)): A(f"{MS} {v(S16[0],4)}, {v(SEL,4)}, {v(WF(s),4)}, {c0}\n{MS} {v(S16[1],4)}, {v(SEL,4)}, {v(WF(s)+4,4)}, {c1}"))
            pres.append(NOP)
    first[28] = len(mains)
    for s in range(28 - DB): streams.append(Stream(rd1(s + DB), first[s], first[s + 1] - 1, prio=2))
    streams.append(Stream(chunk_items(2), 0, first[4 - DB] - 1))
    for c in range(3, 7):
        it = chunk_items(c)
        for wi, (cc, tgt, add) in enumerate(P['warm']):
            if cc == c: it += warm_items(SW1 if tgt == 1 else SW2, add)
        if P['mall'] == c: it += [mall_go]
        if c in p1pf:
            it += pf.items(p1pf[c])
            if c < 6: streams.append(Stream([pf.consume] * p1pf[c], first[4 * (c + 1) - DB] + 1, first[min(4 * (c + 2) - DB, 23)] - 1))
        streams.append(Stream(it, first[4 * (c - 2) - DB] + 1, first[4 * (c - 1) - DB] - 1, paced=True))
    e6 = first[20 - DB]
    streams.append(Stream(([mall_go] if P['mall'] is True else []) + wq_items() + ([mall_go] if P['mall'] == 8 else []), e6 + 1, first[27], paced=True))
    for c in range(5): pres[first[4 * c + 4]] = (lambda c=c: dots(range(4 * c, 4 * c + 4)), 0)
    pres[first[23]] = (lambda: dots(range(20, 28)), 0)
    streams.append(Stream(L(tag_setup()), first[2], first[14]))
    MR, RR = T, T + 48
    tb = [None]
    def pub():
        A(f"""v_cndmask_b32 {v(TM)}, {v(S16[0])}, {v(S16[0]+1)}, vcc
              v_cndmask_b32 {v(TM+1)}, {v(S16[1])}, {v(S16[1]+1)}, vcc
              ds_write_b32 v8, {v(TM)}""")
        tb[0] = A(f"ds_write_b32 v8, {v(TM+1)} offset:512")
    adr = [f"s_lshl_b32 s64, {sW}, 8", f"s_add_u32 s64, s64, {L_M1+1024}", "v_lshl_add_u32 v7, v10, 2, s64", "v_lshl_add_u32 v12, v11, 4, s64",
           "v_lshlrev_b32 v9, 4, v10", f"v_add_u32 v9, {L_M1}, v9", f"v_lshl_add_u32 v8, {sW}, 2, v9"]
    streams.append(Stream(L(adr), first[15], first[22]))
    streams.append(Stream(L(stat_fin + [f"ds_write_b32 v7, {v(MEAN)}", f"ds_write_b32 v7, {v(RSTD)} offset:128"]), first[23], first[25], prio=1))
    streams.append(Stream([pub], first[25] + 1, first[25] + 1))
    streams.append(Stream([lambda: A.barrier(tb[0])] + L([f"ds_read_b128 {v(S16[0],4)}, v9", f"ds_read_b128 {v(S16[1],4)}, v9 offset:512"] +
                   [f"ds_read_b128 {v(MR+4*q,4)}, v12 offset:{q*32}\nds_read_b128 {v(RR+4*q,4)}, v12 offset:{128+q*32}" for q in range(4)]), first[26] + 1, first[28] - 1, prio=1))
    sched(A, mains, pres, streams, P['cap'])
    stamp()
    L_KR = 72 * K
    A(f"""v_lshlrev_b32 v12, 4, v1
          s_add_u32 s62, s68, {L_KR}
          v_add_u32 v13, s62, v12
          s_add_u32 s62, {sW1K}, {L_KR}
          v_add_u32 {v(T+46)}, s62, v12
          v_pk_add_f32 {v(S16[0],2)}, {v(S16[0],2)}, {v(S16[0]+2,2)}
          v_pk_add_f32 {v(S16[1],2)}, {v(S16[1],2)}, {v(S16[1]+2,2)}
          v_add_f32 {v(CSK)}, {v(S16[0])}, {v(S16[0]+1)}
          v_add_f32 {v(CSV)}, {v(S16[1])}, {v(S16[1]+1)}""")
    PK, PV, KD = ACC[2], ACC[2] + 8, ACC[3]
    w1v = L(["v_lshrrev_b32 v5, 4, v1", "v_and_b32 v3, 15, v1", "v_lshlrev_b32 v6, 2, v5", "v_xor_b32 v3, v3, v6", "v_mul_u32_u24 v5, 3584, v5", "v_lshl_add_u32 v3, v3, 4, v5"])
    pf.release(); pf.v1 = 'v3'; nt0 = pf.n_i
    if P['n_t']:
        for f in w1v: f()
    prev = None
    for r in range(0, 16, 2):
        ak, av = ACC[0], ACC[1]
        A(f"v_pk_fma_f32 {v(ak+r,2)}, {v(MR+r,2)}, {v(CSK,2)}, {v(ak+r,2)} op_sel:[0,0,0] op_sel_hi:[1,0,1] neg_lo:[1,0,0] neg_hi:[1,0,0]")
        A(f"v_pk_fma_f32 {v(av+r,2)}, {v(MR+r,2)}, {v(CSK,2)}, {v(av+r,2)} op_sel:[0,1,0] op_sel_hi:[1,1,1] neg_lo:[1,0,0] neg_hi:[1,0,0]")
        A(f"v_pk_fma_f32 {v(ak+r,2)}, {v(ak+r,2)}, {v(RR+r,2)}, s[44:45]")
        A(f"v_pk_mul_f32 {v(av+r,2)}, {v(av+r,2)}, {v(RR+r,2)}")
        if prev: prev()
        prev = phi_pair(ak + r, PK + r // 2, TM + (r & 2))
        A(f"v_cvt_pk_bf16_f32 {v(PV+r//2)}, {v(av+r)}, {v(av+r+1)}")
        if pf.n_i < nt0 + P['n_t'] and (r % 4 == 0 or P['n_t'] > 4): pf.issue()
    A("s_mov_b32 exec_lo, 0x10000000\ns_mov_b32 exec_hi, 0x10000000")
    for r in range(0, 8, 2): A(f"v_pk_mov_b32 {v(PV+r,2)}, s[60:61], s[60:61] op_sel:[1,1]")
    A("s_mov_b64 exec, -1")
    prev()
    for k in range(2):
        A(f"{MF} {v(KD,16)}, {v(PK+4*k,4)}, {v(PV+4*k,4)}, {'0' if k == 0 else v(KD,16)}")
    A(f"""s_lshl_b32 s51, {sJ}, 15
          s_lshl_b32 s62, {sW}, 9
          s_add_u32 s51, s51, s62
          s_add_u32 s51, s51, {WS_KVP}
          s_lshl_b32 s65, {sRB}, 11
          s_add_u32 s65, s65, s51
          s_mov_b32 s48, 0x07060302
          s_mov_b32 s49, 0xfffefffe
          v_lshlrev_b32 {v(T+47)}, 3, v1""")
    for q in range(4): A(f"ds_write_b128 v13, {v(KD+4*q,4)} offset:{q*1024}")
    A.barrier(A.last_lg())
    for ww in range(4): A(f"ds_read_b128 {v(T+4*ww,4)}, {v(T+46)} offset:{ww*4096}")
    A(f"s_add_u32 s59, {sW1K}, {L_WQ}\nv_add_u32 {v(KD)}, s59, {v(RWL)}")
    for t in range(1, 4): A(f"v_xor_b32 {v(KD+t)}, {hex(t*1024)}, {v(KD)}")
    for d in (0, 2): A(f"v_pk_add_f32 {v(T+d,2)}, {v(T+d,2)}, {v(T+4+d,2)}\nv_pk_add_f32 {v(T+8+d,2)}, {v(T+8+d,2)}, {v(T+12+d,2)}")
    for d in (0, 2): A(f"v_pk_add_f32 {v(T+d,2)}, {v(T+d,2)}, {v(T+8+d,2)}")
    for d in range(4): A(f"v_add_u32 {v(T+d)}, 0x10000, {v(T+d)}")
    for d in range(2): A(f"v_perm_b32 {v(T+4+d)}, {v(T+2*d+1)}, {v(T+2*d)}, s48")
    for d in range(2): A(f"v_and_or_b32 {v(T+4+d)}, {v(T+4+d)}, s49, {v(TG+d)}")
    A(f"buffer_store_dwordx2 {v(T+4,2)}, {v(T+47)}, {SWS}, s65 offen sc1")
    stamp()
    A(f"v_mov_b32 {v(T+8)}, v8\nv_mov_b32 {v(T+9)}, v9")
    addr2()
    A.barrier(wq_tok[0])
    pf.give(64, 96)
    stamp('p1')
    QF = lambda k: ACC[2] + (k % 4) * 4
    XE, WE = ACC[1], ACC[1] + 4
    qorder = [4 * c for c in range(7)] + [4 * c + t for c in range(7) for t in range(1, 4)]
    def rdq(k):
        s = qorder[k]
        A(f"ds_read_b64_tr_b16 {v(QF(k),2)}, {v(KD+s%4)} offset:{(s//4)*4096}\nds_read_b64_tr_b16 {v(QF(k)+2,2)}, {v(KD+s%4)} offset:{(s//4)*4096+256}")
    G = lambda p: X0(qorder[p // 2]) + 2 * (p % 2)
    def g_items():
        out = []
        for p in range(16):
            if p % 2 == 0: out += L([f"s_add_u32 s62, {sRB}, {p}", "s_and_b32 s62, s62, 14", "s_lshl_b32 s62, s62, 11", "s_add_u32 s62, s62, s51"])
            out += L([f"buffer_load_dwordx2 {v(G(p),2)}, {v(T+47)}, {SWS}, s62 offen offset:{(p%2)*2048} sc1"])
        return out
    for k in range(3): rdq(k)
    mains, pres = [], []
    for k in range(28):
        def m(k=k):
            A(f"{MF} {v(ACC[0],16)}, {v(QF(k),4)}, {v(X0(qorder[k]),4)}, {'0' if k == 0 else v(ACC[0],16)}")
            if k < 7: A(f"{MS} {v(S16[0],4)}, {v(SEL,4)}, {v(QF(k),4)}, {'0' if k == 0 else v(S16[0],4)}")
        mains.append(m)
        pres.append(((lambda k=k: rdq(k + 2)), 3) if 0 < k < 26 else (lambda: None, 1))
    mains.append(lambda: A(f"{MF} {v(ACC[0],16)}, {v(WE,4)}, {v(XE,4)}, {v(ACC[0],16)}")); pres.append(NOP)
    xe = split(MEAN, TM, TM + 1) + [f"v_cvt_pk_bf16_f32 {v(XE)}, -{v(TM)}, -{v(TM+1)}", f"v_cvt_pk_bf16_f32 {v(XE+1)}, -{v(TM)}, 0",
          f"v_mov_b32 {v(XE+2)}, 0", f"v_mov_b32 {v(XE+3)}, 0", f"v_mov_b32 {v(WE+2)}, 0", f"v_mov_b32 {v(WE+3)}, 0"]
    cst = [None]
    def cs_pub():
        A(f"v_cndmask_b32 {v(TM)}, {v(S16[0])}, {v(S16[0]+1)}, vcc")
        cst[0] = A(f"ds_write_b32 {v(T+8)}, {v(TM)}")
    s_ = S16[1]
    we = [f"v_add_f32 {v(s_)}, {v(s_)}, {v(s_+1)}", f"v_add_f32 {v(s_+2)}, {v(s_+2)}, {v(s_+3)}", f"v_cmp_gt_u32 vcc, 32, v1",
          f"v_add_f32 {v(s_)}, {v(s_)}, {v(s_+2)}", f"v_cndmask_b32 {v(s_)}, 0, {v(s_)}, vcc"] + split(s_, TM, TM + 1) + \
         [f"v_cvt_pk_bf16_f32 {v(WE)}, {v(TM)}, {v(TM)}", f"v_cvt_pk_bf16_f32 {v(WE+1)}, {v(TM+1)}, 0"]
    woi = wo_items()
    g0 = P['g0']
    bulk = woi[:P['wo_q']] + pf.items(P['n_q'])
    woi = woi[P['wo_q']:]
    streams = [Stream(L(xe), 0, 8), Stream([cs_pub], 9, 9), Stream([lambda: A.barrier(cst[0])] + L([f"ds_read_b128 {v(s_,4)}, {v(T+9)}"]), 13, 13),
               Stream(L(we), 18, 26), Stream(bulk, 0, g0 - 1, paced=True), Stream(g_items(), g0, 28, paced=True)]
    sched(A, mains, pres, streams, P['cap'] + 1)
    stamp('p1')
    PQ = T + 48
    prev = None
    for r in range(0, 16, 2):
        A(f"v_pk_fma_f32 {v(ACC[0]+r,2)}, {v(ACC[0]+r,2)}, {v(MEAN,2)}, s[44:45] op_sel:[0,1,0] op_sel_hi:[1,1,1]")
        if prev: prev()
        prev = phi_pair(ACC[0] + r, PQ + r // 2, TM + (r & 2))
    prev()
    A(f"""s_mov_b32 exec_lo, 0
          v_mov_b32 {v(PQ+6)}, 0
          v_mov_b32 {v(PQ+7)}, 0
          s_mov_b64 exec, -1
          s_mov_b32 s44, 0x00003f80
          s_mov_b32 s45, 0x3f800000
          s_mov_b32 s64, 0
          s_lshr_b32 s62, {sW}, 1
          s_lshl_b32 s62, s62, 10
          s_and_b32 s63, {sW}, 1
          s_lshl_b32 s63, s63, 3
          s_add_u32 s62, s62, s63
          s_add_u32 s62, s62, {L_M1+2048}
          v_add_u32 v13, s62, v12
          v_add_u32 v7, {L_M1+2048}, v12
          s_lshl_b32 s62, {sRB}, 2
          s_add_u32 s62, s62, {sW}
          s_lshl_b32 s62, s62, 4
          s_add_u32 s62, s62, {sJ}
          s_lshl_b32 s46, s62, 11
          s_add_u32 s46, s46, {WS_O}
          s_lshl_b32 s69, s62, 2
          s_add_u32 s69, s69, {WS_FF}""")
    stamp()
    BAD = TM; KS = T
    A.label("Lh1")
    for d in range(4): A(f"v_mov_b32 {v(KS+d)}, 0")
    A(f"v_mov_b32 {v(BAD)}, 0")
    for p in range(16):
        A(f"v_xor_b32 {v(G(p))}, {v(G(p))}, {v(TG)}\nv_xor_b32 {v(G(p)+1)}, {v(G(p)+1)}, {v(TG+1)}")
        for i in range(2):
            A(f"v_dot2c_f32_bf16 {v(KS+2*i)}, s44, {v(G(p)+i)}\nv_dot2c_f32_bf16 {v(KS+2*i+1)}, s45, {v(G(p)+i)}")
        A(f"v_or3_b32 {v(BAD)}, {v(BAD)}, {v(G(p))}, {v(G(p)+1)}")
    A(f"""v_and_b32 {v(BAD)}, 0x10001, {v(BAD)}
          v_cmp_ne_u32 vcc, 0, {v(BAD)}
          s_cbranch_vccz Lh1d
          s_add_u32 s64, s64, 1
          s_cmp_ge_u32 s64, {SPIN_MAX//4}
          s_cbranch_scc1 Lh1d""")
    sv = snap()
    for f in g_items(): f()
    A("s_branch Lh1")
    restore(sv)
    A.label("Lh1d")
    stamp()
    A(f"""v_cvt_pk_bf16_f32 {v(KS+4)}, {v(KS)}, {v(KS+1)}
          v_cvt_pk_bf16_f32 {v(KS+5)}, {v(KS+2)}, {v(KS+3)}
          s_cmp_eq_u32 {sW}, 3
          s_cselect_b32 exec_hi, -1, 0
          s_mov_b32 exec_lo, 0
          v_mov_b32 {v(KS+4)}, 0
          v_mov_b32 {v(KS+5)}, 0
          s_mov_b64 exec, -1
          ds_write_b64 v13, {v(KS+4,2)}""")
    for f in woi[:P['wo_c']]: f()
    woi = woi[P['wo_c']:]
    wo_early = not woi and P['wo_c'] == 0
    tk_ = pf.sync_tok() if wo_early else None
    A.barrier(A.last_lg(), tk_)
    pf.give(96, 124)
    A(f"ds_read_b128 {v(T+8,4)}, v7\nds_read_b128 {v(T+12,4)}, v7 offset:1024")
    o = ACC[1]
    A(f"{MF} {v(o,16)}, {v(T+8,4)}, {v(PQ,4)}, 0")
    A(f"{MF} {v(o,16)}, {v(T+12,4)}, {v(PQ+4,4)}, {v(o,16)}")
    A(f"""v_mov_b32 {v(TM)}, {v(o+12)}
          v_mov_b32 {v(TM+1)}, {v(o+12)}
          v_permlane32_swap_b32 {v(TM+1)}, {v(TM)}
          v_add_f32 {v(TM)}, {fh(1e-6)}, {v(TM)}
          v_rcp_f32 {v(TM)}, {v(TM)}""")
    for r in range(0, 16, 2): A(f"v_pk_mul_f32 {v(o+r,2)}, {v(o+r,2)}, {v(TM,2)} op_sel:[0,0] op_sel_hi:[1,0]")
    for r in range(0, 16, 2):
        A(f"v_cvt_pk_bf16_f32 {v(T+r//2)}, {v(o+r)}, {v(o+r+1)}")
        if r == 6: A(f"buffer_store_dwordx4 {v(T,4)}, v12, {SWS}, s46 offen sc1")
    A(f"s_mov_b32 exec_lo, 0\nv_mov_b32 {v(T+6)}, 0\nv_mov_b32 {v(T+7)}, 0\ns_mov_b64 exec, -1")
    t = A(f"buffer_store_dwordx4 {v(T+4,4)}, v12, {SWS}, s46 offen offset:1024 sc1")
    A(f"v_and_b32 v9, 0x780, v9\ns_cmp_ge_u32 {sJ}, 14\ns_cbranch_scc1 Lhelp")
    k_ = min(len(woi), P['n_d'])
    for f in woi[:k_]: f()
    woi = woi[k_:]
    pf.issue(P['n_d'] - k_)
    resid(); bases()
    A(f"""v_and_b32 {v(TM)}, 3, v1
          v_lshrrev_b32 {v(TM+1)}, 2, v1
          s_lshl_b32 s62, {sRB}, 8
          s_lshl_b32 s63, {sJ}, 2
          s_add_u32 s63, s63, s62
          v_lshl_add_u32 {v(VMIR)}, {v(TM)}, 6, s63
          s_mov_b64 exec, 0xf0
          s_lshl_b32 s63, {sHF}, 6
          s_add_u32 s62, s62, s63
          s_lshl_b32 s63, {sCT}, 3
          s_add_u32 s62, s62, s63
          s_add_u32 s62, s62, 0x1000
          v_and_b32 {v(TM+2)}, 1, v1
          v_lshl_add_u32 {v(VMIR)}, {v(TM+2)}, 2, s62
          v_and_b32 {v(TM+2)}, 2, v1
          v_lshl_add_u32 {v(VMIR)}, {v(TM+2)}, 6, {v(VMIR)}
          s_mov_b64 exec, 0xffff00
          s_lshl_b32 s62, {sW}, 6
          s_sub_u32 s62, s66, s62
          s_sub_u32 s62, s62, {WS_FF + 512}
          v_lshl_add_u32 {v(VMIR)}, {v(TM)}, 6, s62
          v_lshl_add_u32 {v(VMIR)}, {v(TM+1)}, 8, {v(VMIR)}
          s_mov_b64 exec, -1""")
    if wo_early:
        for k in range(P.get('rdw0', 12)): rdwo(k)
    A.wait(t)
    setflag("s69")
    rback("s46")
    stamp()
    for f in woi: f()
    wot = A.last_vm()
    small_loads()
    A(f"s_and_b32 s62, {sRB}, 1\ns_mul_i32 s62, s62, 3\ns_add_u32 s62, s62, {sCT}")
    for u in range(7):
        A(f"s_cmp_ge_u32 s62, 7\ns_cselect_b32 s63, 7, 0\ns_sub_u32 s62, s62, s63\ns_lshl_b32 s{36+u}, s62, 14\ns_add_u32 s62, s62, 1")
    pf.issue(P['n_e'])
    if wo_early:
        for k in range(P.get('rdw0', 12), 32): rdwo(k)
        pf.drain()
    else:
        A.barrier(wot)
        for k in range(32): rdwo(k)
    A("v_and_b32 v7, 7, v1\nv_lshlrev_b32 v7, 2, v7")
    poll_begin("v7", "s8")
    A.barrier(A.last_lg(), pf.sync_tok())
    pf.release(); pf.give(156, 160)
    stamp()
    poll_end("v7", "s8")
    stamp()
    otok = {}
    def o_issue(i):
        if i % 4 == 0: A(f"s_add_u32 m0, s10, {i*1024}\ns_add_u32 s62, s9, {i*1024}")
        otok[i] = A(f"buffer_load_dwordx4 v12, {SWS}, s62 offen offset:{(i%4)*1024} sc1 lds")
    for i in range(8): o_issue(i)
    A(f"s_lshr_b32 s63, {sW}, 1\ns_lshl_b32 s63, s63, 15\nv_add_u32 v7, s63, v12")
    pf.consume(max(0, min(pf.n_i, 28 + 28) - pf.n_c))
    for i in range(8, 12): o_issue(i)
    def rd2(k):
        if k in (8, 16, 24): A.barrier(otok[k // 2 + 3])
        A(f"ds_read_b128 {v(T+(k%6)*4,4)}, v7 offset:{order[k]*1024}")
    A.barrier(otok[3], A.last_lg())
    pf.release()
    stamp()
    for k in range(4): rd2(k)
    for i in range(12, 16): o_issue(i)
    HR = T + 48
    mains = [lambda k=k: A(f"{MF} {v(ACC[0],16)}, {a(WOF(k),4)}, {v(T+(k%6)*4,4)}, {v(ACC[0],16)}") for k in range(32)]
    pres = [((lambda k=k: rd2(k + 4)), 2) if k + 4 < 32 else (lambda: None, 1) for k in range(32)]
    fl = [f"v_mov_b32 {v(TM)}, 0", f"v_mov_b32 {v(TM+1)}, 0", "v_lshlrev_b32 v13, 3, v10", "v_lshl_add_u32 v13, v11, 2, v13",
          "s_sub_u32 s62, s12, s11", f"v_and_b32 {v(TM+2)}, 0x80, v9", f"v_add_u32 {v(TM+2)}, s62, {v(TM+2)}",
          "v_cmp_lt_u32 vcc, 31, v1"]
    for d in range(8): fl += [f"v_accvgpr_read_b32 {v(HR+2*d+1)}, {a(B2R+d)}", f"v_lshlrev_b32 {v(HR+2*d)}, 16, {v(HR+2*d+1)}", f"v_and_b32 {v(HR+2*d+1)}, 0xffff0000, {v(HR+2*d+1)}"]
    fl += [f"v_cndmask_b32 v9, v9, {v(TM+2)}, vcc"]
    sched(A, mains, pres, [Stream(L(fl), 2, 30), Stream(pf.items(P['n_f']), 4, 26, paced=True)], P['cap'])
    PH = T + 24
    for d in range(8):
        A(f"v_cvt_pk_bf16_f32 {v(PH+d)}, {v(ACC[0]+2*d)}, {v(ACC[0]+2*d+1)}")
        if d == 3: A(f"buffer_store_dwordx4 {v(PH,4)}, v12, {SWS}, s11 offen {ST}")
    A(f"buffer_store_dwordx4 {v(PH+4,4)}, v12, {SWS}, s11 offen offset:1024 {ST}")
    for d in range(8):
        A(f"v_dot2c_f32_bf16 {v(TM)}, {sONE}, {v(PH+d)}\nv_dot2c_f32_bf16 {v(TM+1)}, {v(PH+d)}, {v(PH+d)}")
    if P.get('st8', False):
        A(f"""v_mov_b32 {v(TM+2)}, {v(TM)}
              v_mov_b32 {v(TM+3)}, {v(TM+1)}
              v_permlane32_swap_b32 {v(TM)}, {v(TM+2)}
              v_permlane32_swap_b32 {v(TM+1)}, {v(TM+3)}
              v_pk_add_f32 {v(TM,2)}, {v(TM,2)}, {v(TM+2,2)}
              s_mov_b32 exec_hi, 0""")
        t = A(f"buffer_store_dwordx2 {v(TM,2)}, v13, {SWS}, s12 offen {ST}")
        A("s_mov_b64 exec, -1")
    else:
        A(f"v_permlane32_swap_b32 {v(TM)}, {v(TM+1)}\nv_add_f32 {v(TM)}, {v(TM)}, {v(TM+1)}")
        t = A(f"buffer_store_dword {v(TM)}, v13, {SWS}, s12 offen {ST}")
    assert pf.n_i >= 28, "w1 must be issued by the end of P2"
    tk = pf.sync_tok() if pf.n_c < 28 else None
    pf.issue(min(P['n_g'], pf.avail()))
    for r in range(0, 16, 2): A(f"v_pk_add_f32 {v(HR+r,2)}, {v(HR+r,2)}, {v(ACC[0]+r,2)}")
    if tk:
        A.barrier(tk)
        pf.consume(28 - pf.n_c)
    A.wait(t)
    setflag("s13")
    rback("s11")
    stamp()
    if pf.held: A.barrier(A.last_lg()); pf.release()
    SC = ACC[3] + 4
    for f in interleave([lambda s=s: A(f"{MS} {v(SC,4)}, {v(SEL,4)}, {a(W1F+4*s,4)}, {'0' if s == 0 else v(SC,4)}") for s in range(28)], [pf.step] * P['n_h']): f()
    A(f"""v_and_b32 v7, 15, v1
          v_min_u32 v7, 13, v7
          v_and_b32 v8, 48, v1
          v_add_lshl_u32 v7, v7, v8, 2""")
    poll_begin("v7", "s14", v(TM + 3))
    A(f"""v_and_b32 v13, 16, v1
          v_cmp_ne_u32 vcc, 0, v13
          v_mov_b32 {v(W3+3)}, 0
          v_lshlrev_b32 {v(ACC[3])}, 16, {v(B1X)}
          v_cndmask_b32 {v(SC)}, {v(SC)}, {v(SC+1)}, vcc
          v_cmp_gt_u32 vcc, 32, v1
          v_lshlrev_b32 v8, 3, v1
          v_cndmask_b32 {v(SC)}, 0, {v(SC)}, vcc
          v_cndmask_b32 {v(ACC[3])}, 0, {v(ACC[3])}, vcc""")
    for l in split(SC, TM, TM + 1): A(l)
    A(f"""v_cvt_pk_bf16_f32 {v(W3)}, {v(TM)}, {v(TM)}
          v_cvt_pk_bf16_f32 {v(W3+1)}, {v(TM+1)}, {v(ACC[3])}
          v_cvt_pk_bf16_f32 {v(W3+2)}, {v(ACC[3])}, 0""")
    AW, AV, AR, AF = ACC[2] + 8, ACC[2] + 9, ACC[2] + 10, ACC[2] + 11
    A(f"""s_add_u32 s62, {sW1K}, {L_MISC}
          v_and_b32 v13, 15, v1
          v_bfe_u32 v8, v1, 4, 1
          v_lshl_add_u32 v13, v13, 1, v8
          v_lshl_add_u32 {v(AW)}, v13, 4, s62
          v_lshl_add_u32 {v(AW+4)}, v13, 3, s62
          v_lshlrev_b32 {v(AR)}, 4, v10
          v_add_u32 {v(AR)}, {L_MISC}, {v(AR)}
          s_and_b32 s62, {sJ}, 1
          s_lshl_b32 s62, s62, 10
          v_subrev_u32 {v(AW+5)}, s62, {v(AR)}
          v_add_u32 {v(AR)}, s62, {v(AR)}
          v_mov_b32 {v(ACC[1]+12)}, 0
          v_mov_b32 {v(ACC[1]+13)}, 0
          v_mov_b32 {v(ACC[1]+14)}, 0
          v_mov_b32 {v(ACC[1]+15)}, 0
          s_lshr_b32 s62, {sW}, 1
          s_lshl_b32 s62, s62, 1
          s_add_u32 s62, s62, {sHF}
          s_lshl_b32 s62, s62, 10
          s_add_u32 s62, s62, {L_MISC+512}
          v_lshl_add_u32 {v(AV)}, v10, 3, s62
          s_lshl_b32 s62, {sHF}, 10
          s_add_u32 s62, s62, {L_MISC+512+4}
          v_and_b32 {v(AF)}, 0xf8, v0
          v_add_u32 {v(AF)}, s62, {v(AF)}
          v_subrev_u32 v3, {96*K}, v5
          v_xor_b32 v4, 64, v3
          v_add_u32 v9, {56*1024}, v12""")
    pf.drain()
    A.barrier(A.last_lg())
    pf.release(); pf.drop_below(116); pf.low = True
    stamp()
    poll_end("v7", "s14", v(TM + 3))
    stamp()
    htok = {}
    def h_items(mt):
        out = []
        for i in range(7):
            if i % 4 == 0: out += L([f"s_add_u32 m0, s68, {(mt*28+i)*1024}", f"s_add_u32 s69, {'s47' if mt & 1 else 's65'}, {(mt*28+i)*1024}"])
            def f(i=i): htok[mt] = A(f"buffer_load_dwordx4 v12, {SWS}, s69 offen offset:{(i%4)*1024} sc1 lds")
            out.append(f)
        return out
    PKD = T + 32
    SL = ACC[1]; EXT = ACC[3]; VAR = ACC[2] + 4; RS2 = ACC[2] + 6
    for i in range(3): A(f"buffer_load_dwordx4 {v(SL+4*i,4)}, v12, {SWS}, s15 offen offset:{i*1024} sc1")
    A(f"s_mov_b32 exec_hi, 0\nbuffer_load_dwordx4 {v(SL+12,4)}, v12, {SWS}, s15 offen offset:3072 sc1\ns_mov_b64 exec, -1")
    h1i = h_items(1)
    for f in h_items(0) + h1i[:P.get('h1pre', 3)]: f()
    mean, var, sig = SL + 4, SL + 6, SL + 5
    ls = [f"v_pk_add_f32 {v(SL,2)}, {v(SL,2)}, {v(SL+4,2)}", f"v_pk_add_f32 {v(SL+2,2)}, {v(SL+2,2)}, {v(SL+6,2)}",
          f"v_pk_add_f32 {v(SL+8,2)}, {v(SL+8,2)}, {v(SL+12,2)}", f"v_pk_add_f32 {v(SL+10,2)}, {v(SL+10,2)}, {v(SL+14,2)}",
          f"v_pk_add_f32 {v(SL,2)}, {v(SL,2)}, {v(SL+8,2)}", f"v_pk_add_f32 {v(SL+2,2)}, {v(SL+2,2)}, {v(SL+10,2)}",
          "v_min_u32 v7, 6, v1", "v_lshlrev_b32 v7, 2, v7",
          f"v_permlane16_swap_b32 {v(SL)}, {v(SL+2)}", f"v_permlane16_swap_b32 {v(SL+1)}, {v(SL+3)}",
          f"v_pk_add_f32 {v(SL,2)}, {v(SL,2)}, {v(SL+2,2)}", f"v_mov_b32 {v(SL+11)}, 0",
          f"v_mov_b32 {v(SL+2)}, {v(SL)}", f"v_mov_b32 {v(SL+3)}, {v(SL+1)}",
          f"v_permlane32_swap_b32 {v(SL)}, {v(SL+2)}", f"v_permlane32_swap_b32 {v(SL+1)}, {v(SL+3)}",
          f"v_pk_add_f32 {v(SL,2)}, {v(SL,2)}, {v(SL+2,2)}",
          f"v_mul_f32 {v(mean)}, {fh(1.0/448)}, {v(SL)}", f"v_mul_f32 {v(var)}, {fh(1.0/448)}, {v(SL+1)}",
          f"v_fma_f32 {v(var)}, -{v(mean)}, {v(mean)}, {v(var)}", f"v_and_b32 {v(SL)}, 0xffff0000, {v(mean)}",
          f"v_max_f32 {v(var)}, 0, {v(var)}", f"v_sub_f32 {v(SL+1)}, {v(mean)}, {v(SL)}",
          f"v_add_f32 {v(var)}, {fh(1e-5)}, {v(var)}", f"v_cvt_pk_bf16_f32 {v(SL+8)}, -{v(SL)}, -{v(SL+1)}",
          f"v_sqrt_f32 {v(sig)}, {v(var)}", f"v_rcp_f32 {v(var+1)}, {v(var)}",
          f"v_and_b32 {v(SL+2)}, 0xffff0000, {v(sig)}", f"v_sub_f32 {v(SL+3)}, {v(sig)}, {v(SL+2)}",
          f"v_cvt_pk_bf16_f32 {v(SL+9)}, -{v(SL)}, {v(SL+2)}", f"v_cvt_pk_bf16_f32 {v(SL+10)}, {v(SL+3)}, 0",
          f"ds_write_b64 {v(AW+4)}, {v(var,2)} offset:512", f"ds_write_b128 {v(AW)}, {v(SL+8,4)}"]
    for l in ls: A(l)
    A(f"s_mov_b32 s16, {sNON}\ns_mov_b32 s17, {sNON}")
    A.barrier(htok[0], A.last_lg())
    stamp()
    NR = 8; PD = 6
    def rd3(idx):
        base, off = ("v12", idx * 1024) if idx < 56 else ("v9", (idx - 56) * 1024)
        A(f"ds_read_b128 {v(T+(idx%NR)*4,4)}, {base} offset:{off}")
    for k in range(PD): rd3(k)
    sttok = {}
    def epi3(mt):
        acc = ACC[mt & 1]; fs = []; sb = 's51' if mt & 1 else 's50'
        for r in range(0, 16, 2):
            fs += L([f"v_mul_f32 {v(acc+e)}, {v(acc+e)}, |{v(acc+e)}|" for e in (r, r + 1)])
            fs += L([f"v_cvt_pk_bf16_f32 {v(PKD+r//2)}, {v(acc+r)}, {v(acc+r+1)}", f"v_pk_max_i16 {v(PKD+r//2)}, {v(PKD+r//2)}, 0"])
            if r == 6: fs += L([f"buffer_store_dwordx4 {v(PKD,4)}, v12, {SWS}, {sb} offen {ST1}"])
        def g(): sttok[mt] = A(f"buffer_store_dwordx4 {v(PKD+4,4)}, v12, {SWS}, {sb} offen offset:1024 {ST1}")
        return fs + [g] + L([f"s_add_u32 {sb}, {sb}, {224*1024}"])
    def flag4(mt): return [] if P.get('noflag') and mt >= 2 else [lambda: A.wait(sttok[mt])] + flag_items("s66") + L(["s_add_u32 s66, s66, 256"])
    pq_s = lambda q: 's45' if q & 1 else 's67'
    if not P.get('smem', True):
        spoll_begin = lambda o: poll_begin("v7", o)
        spoll_end = poll_end
    if P.get('nogate'):
        spoll_begin = lambda o: None
        spoll_end = lambda a_, b_: None
    def gate4(q): return [lambda: spoll_end("v7", pq_s(q))] + L([f"s_add_u32 {pq_s(q)}, {pq_s(q)}, 512"])
    sget = [f"ds_read_b128 {v(EXT+4*k,4)}, {v(AW+5) if k & 1 else v(AR)} offset:{k*1024}" for k in range(4)] + \
           [f"ds_read_b32 {v(VAR)}, {v(AV)}", f"ds_read_b32 {v(RS2)}, {v(AF)}", f"ds_read_b32 {v(RS2+1)}, {v(AF)} offset:2048"]
    FB = lambda n: a(224 + 4 * (n % 36), 4) if n % 36 < 8 else a(W1F + 4 * (n % 36 - 8), 4)
    nld = [0]
    def ld_items(cnt_):
        out = []
        for _ in range(cnt_):
            n = nld[0]; nld[0] += 1
            q, r = divmod(n, 14); sb = 's44' if q & 1 else 's49'
            if r % 2 == 0: out += L([f"s_add_u32 s69, {sb}, s{36 + r // 2}"])
            out += L([f"buffer_load_dwordx4 {FB(n)}, v12, {SWS}, s69 offen offset:{(r%2)*1024} sc1"])
            if r == 13: out += L([f"s_add_u32 {sb}, {sb}, {224*1024}"])
        return out
    mains, pres = [], []
    for mt in range(4):
        d = v(ACC[mt & 1], 16)
        for s in range(28):
            idx = mt * 28 + s
            def pre(idx=idx, s=s):
                if s in (0, 14) and idx: stamp('p3')
                nxt = idx + PD
                if nxt < 112:
                    if nxt % 28 == 0:
                        A.barrier(htok[nxt // 28])
                        if nxt == 28: pf.give(112, 116)
                        if nxt == 56: pf.give(0, 28)
                        if nxt == 84: pf.give(28, 56)
                    rd3(nxt)
                if s % 2 == 0: A.wait(A.pend.get(f"v{T+((idx+1)%NR)*4}"))
            pres.append((pre, 2 - s % 2 + (2 if (idx + PD) % 28 == 0 else 0)))
            mains.append(lambda d=d, s=s, idx=idx: A(f"{MF} {d}, {a(W1F+4*s,4)}, {v(T+(idx%NR)*4,4)}, {'0' if s == 0 else d}"))
        mains.append(lambda d=d, mt=mt: A(f"{MF} {d}, {v(W3,4)}, {v(EXT+4*mt,4)}, {d}")); pres.append(NOP)
    w2s = P['w2s']; f0, f1, f2, f3 = P['fl']; ea = P['early']
    streams = [Stream(h1i[P.get('h1pre', 3):], 0, 10, paced=True), Stream(h_items(2) + h_items(3), 12, w2s - 1, paced=True),
               Stream(L(sget), 1, 8),
               Stream(L([f"v_mul_f32 {v(HR+r)}, {v(HR+r)}, {v(VAR)}" for r in range(16)]), 12, 27),
               Stream(pf.items(P['n_p3']), w2s, ea - 8, paced=True),
               Stream(epi3(0), 32, 44, prio=1), Stream(epi3(1), 61, 73, prio=1), Stream(epi3(2), 90, 102, prio=1),
               Stream(flag4(0), f0, f0 + 1), Stream(flag4(1), f1, f1 + 1),
               Stream([lambda: spoll_begin("s67")], ea - P.get('sp0', 1), ea - P.get('sp0', 1)),
               Stream(gate4(0) + ld_items(8), ea, 113, paced=True)]
    if P.get('c_p3'): streams.append(Stream([pf.consume] * P['c_p3'], 74, 89))
    sched(A, mains, pres, streams, P['cap'])
    stamp()
    for f in ld_items(P['pre4']): f()
    for f in epi3(3): f()
    A(f"v_mov_b32 {v(TM)}, {v(RS2)}\nv_mov_b32 {v(TM+2)}, {v(RS2+1)}")
    def mf4(n, nt):
        p, s = divmod(n, 28)
        d = v(ACC[2 * p + nt], 16)
        if s == 0:
            la = A.newlabel("Lia"); lb = A.newlabel("Lib")
            A(f"s_cmp_eq_u32 {sW}, {2*p+nt}")
            ins = f"{MF} {d}, {w2reg(0,nt)}, {FB(n)}, {v(HR,16)}"
            A.pre(ins)
            A.raw(f"    s_cbranch_scc1 {la}\n    {MF} {d}, {w2reg(0,nt)}, {FB(n)}, 0\n    s_branch {lb}\n{la}:")
            A(ins)
            A.label(lb)
        else:
            assert pf.n_c >= min(pf.total, 28 + 2 * (s + 1)), (n, pf.n_c)
            A(f"{MF} {d}, {w2reg(s,nt)}, {FB(n)}, {d}")
    RW, RD, RO = T + 36, T + 37, T + 38
    def red_write(p): return L([f"ds_write_b128 {v(RW)}, {v(ACC[2*p+nt]+4*q,4)} offset:{p*36864+(nt*4+q)*1088}" for nt in range(2) for q in range(4)])
    def red_read(p): return L([f"ds_read_b128 {v(T+8*ww+4*u,4)}, {v(RD)} offset:{p*36864+ww*8*1088+512*u}" for ww in range(4) for u in range(2)])
    def red_fin(p, packed):
        ls = []
        if packed:
            for d in range(0, 8, 2): ls += [f"v_pk_add_f32 {v(T+d,2)}, {v(T+d,2)}, {v(T+8+d,2)}"]
            for d in range(0, 8, 2): ls += [f"v_pk_add_f32 {v(T+16+d,2)}, {v(T+16+d,2)}, {v(T+24+d,2)}"]
            for d in range(0, 8, 2): ls += [f"v_pk_add_f32 {v(T+d,2)}, {v(T+d,2)}, {v(T+16+d,2)}"]
            for d in range(0, 8, 2): ls += [f"v_pk_mul_f32 {v(T+d,2)}, {v(T+d,2)}, {v(TM+2*p,2)} op_sel:[0,0] op_sel_hi:[1,0]"]
        else:
            for d in range(8): ls += [f"v_add_f32 {v(T+d)}, {v(T+d)}, {v(T+8+d)}", f"v_add_f32 {v(T+16+d)}, {v(T+16+d)}, {v(T+24+d)}"]
            for d in range(8): ls += [f"v_add_f32 {v(T+d)}, {v(T+d)}, {v(T+16+d)}"]
            for d in range(8): ls += [f"v_mul_f32 {v(T+d)}, {v(T+d)}, {v(TM+2*p)}"]
        for d in range(4): ls += [f"v_cvt_pk_bf16_f32 {v(T+32+d)}, {v(T+2*d)}, {v(T+2*d+1)}"]
        ls += [f"buffer_store_dwordx4 {v(T+32,4)}, {v(RO)}, {SOUT}, s48 offen {P.get('outflag','sc1')}", f"s_add_u32 s48, s48, {64*896}"]
        return L(ls)
    adr4 = [f"s_mul_i32 s51, {sW}, {8*1088}", f"s_add_u32 s51, s51, {L_RED}", f"v_add_u32 {v(RW)}, s51, v12", f"v_and_b32 {v(RO)}, 7, v0",
            f"v_mul_u32_u24 {v(RD)}, 1088, {v(RO)}", f"v_lshrrev_b32 v8, 3, v0", f"v_lshl_add_u32 {v(RD)}, v8, 4, {v(RD)}", f"v_add_u32 {v(RD)}, {L_RED}, {v(RD)}",
            f"v_mul_u32_u24 v8, 896, v8", f"v_lshl_add_u32 {v(RO)}, {v(RO)}, 4, v8"]
    mains = [lambda n=n, nt=nt: mf4(n, nt) for n in range(56) for nt in range(2)]
    pres = [((lambda n=n: stamp('p4') if n % 16 == 0 else (stamp('p4f') if n % 4 == 0 and n < 44 else None)), 1 - n % 2) for n in range(112)]
    rem = pf.total - pf.n_r; staged = pf.n_r - pf.n_c
    c0 = pf.n_c - 28
    g1, g2, g3, ge = P['gates']; sp = P.get('sp', 8)
    q0 = ld_items(14 - nld[0])
    streams = [Stream(q0, 0, g1 - 1, paced=True, prio=1),
               Stream([lambda: spoll_begin("s45")], max(0, g1 - sp), max(0, g1 - sp)),
               Stream(gate4(1) + merge2(ld_items(14), pf.items(rem)), g1, g2 - 1, paced=True, prio=1),
               Stream([lambda: spoll_begin("s67")], g2 - sp, g2 - sp),
               Stream(gate4(2) + ld_items(14), g2, g3 - 1, paced=True, prio=1),
               Stream([lambda: spoll_begin("s45")], g3 - sp, g3 - sp),
               Stream(gate4(3) + ld_items(14), g3, ge, paced=True, prio=1),
               Stream(flag4(2), f2, f2 + 1), Stream(flag4(3), f3, f3 + 1),
               Stream(L(adr4), 30, 50),
               Stream([lambda: A.barrier()], 1, 1), Stream(red_write(0), 61, 74, paced=True),
               Stream([lambda: A.barrier(A.last_lg())] + red_read(0), 80, 84),
               Stream([lambda: A(f"s_cmp_eq_u32 {sW}, 0\ns_cselect_b32 s62, 0, 0x7ff00000\ns_add_u32 s62, s62, {WS_FS}\nbuffer_store_dword v14, {v(VMIR)}, {SWS}, s62 offen sc1"),
                       lambda: A(f"s_or_b32 s62, s2, {sW}\ns_cselect_b32 s62, 0x7ffffff0, 0\nbuffer_store_dword v14, v15, {SWS}, s62 offen sc1")], ge + 2, ge + 3),
               Stream(red_fin(0, False), 88, 106)]
    assert ge + 2 > 84
    if staged: streams.append(Stream([pf.consume] * staged, 0, max(1, min(c0 - 4, 2 * staged))))
    for i in range(rem):
        k = c0 + staged + i
        streams.append(Stream([pf.consume], max(0, 2 * (k // 2) - 5), max(0, 2 * (k // 2) - 5)))
    sched(A, mains, pres, streams, P['cap'])
    stamp('p4')
    for f in red_write(1): f()
    A.barrier(A.last_lg())
    stamp('p4')
    for f in red_read(1) + red_fin(1, True): f()
    stamp()
    A("s_branch Lfin")
    A.label("Lhelp")
    A.raw("    s_waitcnt vmcnt(0)")
    setflag("s69")
    rback("s46")
    A(f"s_add_u32 s69, s69, {WS_FS-WS_FF}")
    if P['helper']:
        A.raw("    s_waitcnt vmcnt(0)\n    s_barrier")
        A(f"""s_and_b32 s62, {sRB}, 1
              s_lshl_b32 s62, s62, 1
              s_and_b32 s63, {sJ}, 1
              s_add_u32 s62, s62, s63
              s_lshl_b32 s62, s62, 2
              s_add_u32 s62, s62, {sW}
              s_lshl_b32 s62, s62, 13
              v_lshlrev_b32 v2, 7, v1""")
        def h1touch():
            A(f"""s_mul_i32 s64, {sRB}, {448*1024}
                  s_lshl_b32 s63, s63, 2
                  s_add_u32 s63, s63, {sW}
                  s_lshl_b32 s63, s63, 13
                  s_add_u32 s64, s64, s63
                  s_add_u32 s64, s64, {WS_H1}""")
            for i in range(7): A(f"buffer_load_dword v{32+i}, v2, {SWS}, s64 offen\ns_add_u32 s64, s64, {8*8192}")
        for i in range(13):
            if P.get('h1t', -1) == i: h1touch()
            A(f"buffer_load_dword v{16+i}, v2, {SW2}, s62 offen\ns_add_u32 s62, s62, {16*8192}")
        A.raw("    s_waitcnt vmcnt(0)")
    A(f"buffer_store_dword v14, v15, {SWS}, s69 offen sc1")
    if False:
        if P.get('wb'):
            A(f"""s_cmp_lg_u32 {sW}, 0
                  s_cbranch_scc1 Lfin
                  s_cmp_lg_u32 {sJ}, 14
                  s_cbranch_scc1 Lfin
                  v_and_b32 v2, 7, v1
                  v_min_u32 v2, 6, v2
                  v_and_b32 v3, 56, v1
                  v_add_lshl_u32 v2, v2, v3, 2""")
            for stg in P['wb']:
                A(f"""s_lshl_b32 s62, {sRB}, 10
                      s_add_u32 s62, s62, {WS_FF+0x2000+256*stg}
                      s_mov_b32 s64, 0""")
                A.raw(f"""Lwb{stg}:
    s_sleep 4
    buffer_load_dword v13, v2, {SWS}, s62 offen sc1
    s_waitcnt vmcnt(0)
    v_cmp_ne_u32 vcc, v13, v14
    s_nop 1
    s_cbranch_vccz Lwbd{stg}
    s_add_u32 s64, s64, 1
    s_cmp_lt_u32 s64, 200
    s_cbranch_scc1 Lwb{stg}
Lwbd{stg}:
    buffer_wbl2 sc1
    s_waitcnt vmcnt(0)""")
    A.label("Lfin")
    if stamps:
        A.raw("    s_waitcnt lgkmcnt(0)")
        A(f"s_lshl_b32 s62, s2, 8\ns_add_u32 s62, s62, {WS_STAMP}\ns_cmp_lg_u32 {sW}, 0\ns_cbranch_scc1 Lend\ns_mov_b64 exec, 1")
        for i in range(ns[0]):
            A(f"v_mov_b32 v2, s{sreg(i)}\nv_mov_b32 v3, s{sreg(i)+1}\nbuffer_store_dwordx2 v[2:3], v15, {SWS}, s62 offen offset:{i*8}")
    A.label("Lend")
    A.raw("    s_endpgm")
    assert ns[0] <= 16, ns[0]
    k = NAME + "_kernel"
    return HDR + f"""; @launch grid=(256,1,1) block=(256,1,1) lds=163840
.amdgcn_target "amdgcn-amd-amdhsa--gfx950"
.text
.globl {k}
.p2align 8
.type {k},@function
{k}:
""" + A.text() + f""".section .rodata,"a"
.p2align 6
.amdhsa_kernel {k}
  .amdhsa_next_free_vgpr 512
  .amdhsa_next_free_sgpr 102
  .amdhsa_accum_offset 256
  .amdhsa_group_segment_fixed_size 0
  .amdhsa_kernarg_size 88
  .amdhsa_user_sgpr_count 2
  .amdhsa_user_sgpr_kernarg_segment_ptr 1
  .amdhsa_system_sgpr_workgroup_id_x 1
.end_amdhsa_kernel
"""

if __name__ == "__main__":
    open("k15.s", "w").write(gen(False))
    open("k15_st.s", "w").write(gen("s_memrealtime"))
```
